```python
import torch

def _softmax(x, axis=-1):
    return torch.softmax(x, dim=axis)
def _gelu(x):
    return torch.nn.functional.gelu(x, approximate="tanh")
def _silu(x):
    return torch.nn.functional.silu(x)
def _sigmoid(x):
    return torch.sigmoid(x)
def _layernorm(x, axis=-1, eps=1e-5):
    m = x.mean(dim=axis, keepdim=True)
    v = x.var(dim=axis, keepdim=True, unbiased=False)
    return (x - m) / torch.sqrt(v + eps)
def _scatter_add(tgt, idx, src, axis=0):
    return tgt.clone().index_add_(axis, idx, src)
def _segment_sum(src, seg, n):
    out = torch.zeros((n,) + src.shape[1:], dtype=src.dtype)
    return out.index_add_(0, seg, src)
def _pad(x, pw):
    flat = tuple(v for pair in reversed(pw) for v in pair)
    return torch.nn.functional.pad(x, flat)

kernel_name = 'standalone__gqa_block_cached__sampling'

def setup_inputs():

    _w = (lambda a: (lambda t: t.to(torch.bfloat16) if t.is_floating_point() else t)(torch.as_tensor(a)))
    B, Sq, D = 8, 1, 448
    Hq, Hkv, Sk, Dh = 16, 8, 8192, 256
    assert Hq % Hkv == 0, (Hq, Hkv)
    return {
        "x": _w((lambda *s: torch.randn(*s, dtype=torch.bfloat16) * 0.8)(B, Sq, D)),
        "k_cache": _w((lambda *s: torch.randn(*s, dtype=torch.bfloat16) * 0.8)(B, Hkv, Sk, Dh)),
        "v_cache": _w((lambda *s: torch.randn(*s, dtype=torch.bfloat16) * 0.05)(B, Hkv, Sk, Dh)),
        "wq": _w((lambda *s: torch.randn(*s, dtype=torch.bfloat16) * 0.8)(D, Hq * Dh) * (D ** -0.5)),
        "wo": _w((lambda *s: torch.randn(*s, dtype=torch.bfloat16) * 0.05)(Hq * Dh, D) * ((Hq * Dh) ** -0.5)),
    }

def reference(x, k_cache, v_cache, wq, wo):
    B, Sq, D = x.shape
    Hq, Dh = 16, 256
    Hkv = k_cache.shape[1]
    rep = Hq // Hkv
    q = (lambda x, *d: x.permute(*d))((x @ wq).reshape(B, Sq, Hq, Dh), 0, 2, 1, 3)
    k = (lambda x, n, axis: torch.repeat_interleave(x, n, dim=axis))(k_cache, rep, axis=1)
    v = (lambda x, n, axis: torch.repeat_interleave(x, n, dim=axis))(v_cache, rep, axis=1)
    scores = torch.einsum("bhqd,bhkd->bhqk", q, k) * (Dh ** -0.5)
    p = _softmax(scores, axis=-1)
    o = torch.einsum("bhqk,bhkd->bhqd", p, v)
    return (lambda x, *d: x.permute(*d))(o, 0, 2, 1, 3).reshape(B, Sq, Hq * Dh) @ wo
```

```python
import sys

NAME = 'standalone__gqa_block_cached__sampling_kernel'
QNAME = 'gqa_qproj_kernel'

WS_G = 0
WS_Q = 0x1000
WS_P = 0x40000
WS_ML = 0x140000
WS_Y = 0x180000
WS_T = 0x280000
WS_SIZE = 0x300000

L_O = 0
L_ML = 0x4000
L_o = 0x4200
L_Q = 0x4400
LDS_SIZE = 0x4800

sK, sV, sWS, sX, sWQ, sWO, sOUT, sDBG = 20, 24, 28, 32, 36, 40, 44, 48
sTAG, sG, sC1, sSLO, sSHI, sKO, sVO, sT0, sT1, sCNT, sTO = 52, 53, 54, 55, 56, 57, 58, 59, 60, 61, 62
sMG1, sMG2, sEX = 64, 66, 68
sU = 70
sTS = 80

vLANE, vKOFF, vVOFF, vM, vL, vMA, vMB = 0, 1, 2, 3, 4, 5, 6
vT = 7
vS = 16
vPA, vPB = 24, 28
vB = 32
vAL = 44
vC, vG_ = 46, 47
vKB, vVB, vO = 48, 112, 176
NV = 208
NA = 32


def srd(n):
    return f's[{n}:{n+3}]'


def vr(n, k=4):
    return f'v[{n}:{n+k-1}]'


def ar(n, k=4):
    return f'a[{n}:{n+k-1}]'


class Gen:
    def __init__(self, mode='fused', poll='late', ts=0, vorder='half', timeout=1 << 18):
        self.o = []
        self.mode, self.poll, self.ts, self.vorder, self.timeout = mode, poll, ts, vorder, timeout
        self.nts = 0

    def A(self, s):
        self.o.append('    ' + s)

    def L(self, s):
        self.o.append(s + ':')

    def stamp(self):
        if self.ts:
            n = sTS + 2 * self.nts
            self.nts += 1
            assert self.nts <= 8
            self.A(f's_memrealtime s[{n}:{n+1}]')

    def mk_srd(self, n, p, size):
        A = self.A
        A(f's_mov_b32 s{n}, s{p}')
        A(f's_mov_b32 s{n+1}, s{p+1}')
        A(f's_mov_b32 s{n+2}, {size:#x}')
        A(f's_mov_b32 s{n+3}, 0x00020000')

    def prologue(self, lab):
        A = self.A
        A('s_cmp_ge_u32 s2, 256')
        A(f's_cbranch_scc1 {lab}_end')
        A('s_load_dwordx16 s[4:19], s[0:1], 0')
        A(f'v_lshrrev_b32 v{vT}, 6, v0')
        A(f'v_and_b32 v{vLANE}, 63, v0')
        A(f'v_readfirstlane_b32 s3, v{vT}')
        A(f'v_and_b32 v{vC}, 15, v{vLANE}')
        A(f'v_lshrrev_b32 v{vG_}, 4, v{vLANE}')
        A(f'v_lshlrev_b32 v{vKOFF}, 9, v{vC}')
        A(f'v_lshl_add_u32 v{vKOFF}, v{vG_}, 4, v{vKOFF}')
        A(f'v_lshlrev_b32 v{vVOFF}, 11, v{vG_}')
        A(f'v_lshl_add_u32 v{vVOFF}, v{vC}, 4, v{vVOFF}')
        A(f's_lshl_b32 s{sKO}, s2, 20')
        A(f's_lshl_b32 s{sT0}, s3, 17')
        A(f's_add_u32 s{sKO}, s{sKO}, s{sT0}')
        A(f's_mov_b32 s{sVO}, s{sKO}')
        A('s_waitcnt lgkmcnt(0)')
        A(f's_load_dword s{sG}, s[18:19], {WS_G}')
        self.mk_srd(sK, 6, 0x10000000)
        self.mk_srd(sV, 8, 0x10000000)
        self.mk_srd(sWS, 18, WS_SIZE)
        self.mk_srd(sX, 4, 8 * 448 * 2)
        self.mk_srd(sWQ, 10, 448 * 4096 * 2)
        self.mk_srd(sWO, 12, 4096 * 448 * 2)
        self.mk_srd(sOUT, 14, 8 * 448 * 2)
        self.mk_srd(sDBG, 16, 256)

    def mk_tag(self):
        A = self.A
        A(f's_add_u32 s{sG}, s{sG}, 1')
        A(f's_mul_i32 s{sTAG}, s{sG}, 0x9e3779b1')
        A(f's_xor_b32 s{sTAG}, s{sTAG}, 0x5bd1e995')

    QSH, QX, QB = vO, vO + 16, vO + 24

    def q_issue(self):
        A = self.A
        A(f's_and_b32 s{sU}, s2, 7')
        A(f's_lshl_b32 s{sU}, s{sU}, 5')
        A(f's_lshr_b32 s{sU+1}, s2, 3')
        A(f's_add_u32 s{sU}, s{sU}, s{sU+1}')
        A(f's_lshl_b32 s{sU+1}, s{sU}, 5')
        A(f's_lshl_b32 s{sU+2}, s3, 19')
        A(f's_add_u32 s{sU+1}, s{sU+1}, s{sU+2}')
        A(f'v_lshlrev_b32 v{vT}, 16, v{vG_}')
        A(f'v_lshl_add_u32 v{vT}, v{vC}, 1, v{vT}')
        A(f'v_and_b32 v{vT+1}, 7, v{vC}')
        A(f'v_mul_u32_u24 v{vT+1}, 896, v{vT+1}')
        A(f'v_lshl_add_u32 v{vT+1}, v{vG_}, 4, v{vT+1}')
        A(f's_lshl_b32 s{sU+2}, s3, 7')
        for kt in range(2):
            A(f'buffer_load_dwordx4 {vr(self.QX + 4*kt)}, v{vT+1}, {srd(sX)}, s{sU+2} offen offset:{64*kt}')
        for kt in range(2):
            for i in range(8):
                A(f's_add_u32 s{sU+3}, s{sU+1}, {kt*262144 + i*8192}')
                A(f'buffer_load_ushort v{self.QSH + kt*8 + i}, v{vT}, {srd(sWQ)}, s{sU+3} offen')

    def q_compute(self, younger):
        A = self.A
        A(f's_waitcnt vmcnt({younger})')
        for kt in range(2):
            for u in range(4):
                A(f'v_lshl_or_b32 v{self.QB + kt*4 + u}, v{self.QSH + kt*8 + 2*u + 1}, 16, v{self.QSH + kt*8 + 2*u}')
        A(f'v_and_b32 v{vT+2}, 1, v{vG_}')
        A(f'v_lshlrev_b32 v{vT+2}, 4, v{vT+2}')
        A(f'v_lshl_add_u32 v{vT+2}, v{vC}, 5, v{vT+2}')
        A(f'v_mfma_f32_16x16x32_bf16 {vr(vS)}, {vr(self.QX)}, {vr(self.QB)}, 0')
        A(f'v_mfma_f32_16x16x32_bf16 {vr(vS)}, {vr(self.QX+4)}, {vr(self.QB+4)}, {vr(vS)}')
        A(f's_lshl_b32 s{sU+2}, s3, 9')
        A(f'v_add_u32 v{vT+2}, s{sU+2}, v{vT+2}')
        A('s_nop 7')
        A(f'ds_write_b128 v{vT+2}, {vr(vS)} offset:{L_O}')

    def q_publish(self):
        A = self.A
        A(f'v_and_b32 v{vT}, 7, v{vLANE}')
        A(f'v_lshrrev_b32 v{vT+1}, 3, v{vLANE}')
        A(f'v_lshlrev_b32 v{vT+2}, 6, v{vT}')
        A(f'v_lshl_add_u32 v{vT+2}, v{vT+1}, 2, v{vT+2}')
        base = vO
        for w in range(7):
            A(f'v_add_u32 v{vT+3}, {L_O + w*512}, v{vT+2}')
            A(f'ds_read2_b32 {vr(base + 2*w, 2)}, v{vT+3} offset0:0 offset1:8')
        A(f'v_lshlrev_b32 v{vT+1}, 14, v{vT+1}')
        A(f'v_lshl_add_u32 v{vT+1}, v{vT}, 3, v{vT+1}')
        A(f's_lshl_b32 s{sU+1}, s{sU}, 6')
        A(f's_add_u32 s{sU+1}, s{sU+1}, {WS_Q}')
        A('s_waitcnt lgkmcnt(0)')
        for w in range(1, 7):
            A(f'v_add_f32 v{base}, v{base}, v{base + 2*w}')
            A(f'v_add_f32 v{base+1}, v{base+1}, v{base + 2*w + 1}')
        A(f'v_cvt_pk_bf16_f32 v{vT+5}, v{base}, v{base+1}')
        A(f'v_mov_b32 v{vT+6}, s{sTAG}')
        A(f'buffer_store_dwordx2 {vr(vT+5, 2)}, v{vT+1}, {srd(sWS)}, s{sU+1} offen sc1')

    def gen_count(self):
        A = self.A
        A(f'v_mov_b32 v{vT+7}, 0')
        A(f'v_mov_b32 v{vT+8}, 1')
        A(f's_mov_b64 s[{sEX}:{sEX+1}], exec')
        A('s_mov_b64 exec, 1')
        A(f'buffer_atomic_add v{vT+8}, v{vT+7}, {srd(sDBG)}, 0 offen sc0')
        A(f's_mov_b64 exec, s[{sEX}:{sEX+1}]')

    def gen_update(self, lab):
        A = self.A
        A(f'v_readfirstlane_b32 s{sU+4}, v{vT+8}')
        A('s_nop 3')
        A(f's_cmp_lg_u32 s{sU+4}, 255')
        A(f's_cbranch_scc1 {lab}_nogen')
        A(f'v_mov_b32 v{vT+8}, s{sG}')
        A(f's_mov_b64 s[{sEX}:{sEX+1}], exec')
        A('s_mov_b64 exec, 1')
        A(f'buffer_store_dword v{vT+8}, v{vT+7}, {srd(sWS)}, 0 offen offset:{WS_G} sc1')
        A(f's_mov_b64 exec, s[{sEX}:{sEX+1}]')
        self.L(f'{lab}_nogen')

    def q_poll_addr(self):
        A = self.A
        A(f's_lshr_b32 s{sU+1}, s2, 2')
        A(f's_lshl_b32 s{sU+1}, s{sU+1}, 11')
        A(f's_add_u32 s{sU+1}, s{sU+1}, {WS_Q}')
        A(f'v_lshlrev_b32 v{vT}, 5, v{vLANE}')

    def q_poll_issue(self):
        A = self.A
        A(f'buffer_load_dwordx4 {vr(vS)}, v{vT}, {srd(sWS)}, s{sU+1} offen sc1')
        A(f'buffer_load_dwordx4 {vr(vS+4)}, v{vT}, {srd(sWS)}, s{sU+1} offen offset:16 sc1')

    def q_poll_check(self):
        A = self.A
        A(f'v_xor_b32 v{vT+1}, s{sTAG}, v{vS+1}')
        A(f'v_xor_b32 v{vT+2}, s{sTAG}, v{vS+3}')
        A(f'v_xor_b32 v{vT+3}, s{sTAG}, v{vS+5}')
        A(f'v_xor_b32 v{vT+4}, s{sTAG}, v{vS+7}')
        A(f'v_or3_b32 v{vT+1}, v{vT+1}, v{vT+2}, v{vT+3}')
        A(f'v_or_b32 v{vT+1}, v{vT+1}, v{vT+4}')
        A(f'v_cmp_ne_u32 vcc, 0, v{vT+1}')

    def q_to_lds(self):
        A = self.A
        A(f'v_lshlrev_b32 v{vT+1}, 4, v{vLANE}')
        A(f'v_add_u32 v{vT+1}, {L_Q}, v{vT+1}')
        A(f'ds_write2_b32 v{vT+1}, v{vS}, v{vS+2} offset0:0 offset1:1')
        A(f'ds_write2_b32 v{vT+1}, v{vS+4}, v{vS+6} offset0:2 offset1:3')

    def k_load(self, j):
        so = f's{sT0}' if j >> 3 else f's{sKO}'
        self.A(f'buffer_load_dwordx4 {vr(vKB + 4*j)}, v{vKOFF}, {srd(sK)}, {so} offen offset:{(j & 7)*64} nt')

    def v_load(self, half, i):
        so = f's{sT1}' if i >> 2 else f's{sVO}'
        self.A(f'buffer_load_dwordx4 {vr(vVB + half*32 + 4*i)}, v{vVOFF}, {srd(sV)}, {so} offen '
               f'offset:{(i & 3)*512 + half*256} nt')

    def k_issue_all(self):
        self.A(f's_add_u32 s{sT0}, s{sKO}, 8192')
        for j in range(16):
            self.k_load(j)
        self.A(f's_add_u32 s{sKO}, s{sKO}, 16384')

    def v_issue_all(self):
        self.A(f's_add_u32 s{sT1}, s{sVO}, 8192')
        for half in range(2):
            for i in range(8):
                self.v_load(half, i)
        self.A(f's_add_u32 s{sVO}, s{sVO}, 16384')

    def wo_issue(self):
        A = self.A
        A(f's_and_b32 s{sU}, s2, 31')
        A(f's_mul_i32 s{sU}, s{sU}, {128*896}')
        A(f's_lshl_b32 s{sU+1}, s3, 7')
        A(f's_add_u32 s{sU}, s{sU}, s{sU+1}')
        A(f'v_mul_u32_u24 v{vT+8}, 7168, v{vG_}')
        A(f'v_lshl_add_u32 v{vT+8}, v{vC}, 3, v{vT+8}')
        A('s_cmp_eq_u32 s3, 7')
        A(f's_cselect_b32 s{sU+1}, 0x40000000, 0')
        A(f'v_add_u32 v{vT+8}, s{sU+1}, v{vT+8}')
        for ks in range(4):
            for i in range(8):
                if (i & 3) == 0:
                    A(f's_add_u32 s{sU+1}, s{sU}, {ks*32*896 + (i >> 2)*3584}')
                A(f'buffer_load_dwordx2 {vr(vKB + ks*16 + 2*i, 2)}, v{vT+8}, {srd(sWO)}, s{sU+1} offen offset:{(i & 3)*896}')

    def xlane(self, t0, t1, op):
        A = self.A
        for ins in ('v_permlane16_swap_b32', 'v_permlane32_swap_b32'):
            A(f'v_mov_b32 v{t1}, v{t0}')
            A('s_nop 1')
            A(f'{ins} v{t0}, v{t1}')
            A('s_nop 0')
            A(f'{op} v{t0}, v{t0}, v{t1}')

    def tile(self, last):
        A = self.A
        if not last:
            A(f's_add_u32 s{sT0}, s{sKO}, 8192')
        for j in range(16):
            T, s = j >> 3, j & 7
            A(f's_waitcnt vmcnt({31 - j if last else 31})')
            c = '0' if s == 0 else vr(vS + 4*T)
            A(f'v_mfma_f32_16x16x32_bf16 {vr(vS + 4*T)}, {vr(vKB + 4*j)}, {ar(4*s)}, {c}')
            if not last:
                self.k_load(j)
        if not last:
            A(f's_add_u32 s{sKO}, s{sKO}, 16384')
            A(f's_add_u32 s{sT1}, s{sVO}, 8192')
            A('s_nop 5')
        else:
            self.wo_issue()
        t0, t1, t2, al = vT, vT + 1, vT + 2, vT + 3
        A(f'v_max3_f32 v{t0}, v{vS}, v{vS+1}, v{vS+2}')
        A(f'v_max3_f32 v{t0}, v{t0}, v{vS+3}, v{vS+4}')
        A(f'v_max3_f32 v{t0}, v{t0}, v{vS+5}, v{vS+6}')
        A(f'v_max_f32 v{t0}, v{t0}, v{vS+7}')
        self.xlane(t0, t1, 'v_max_f32')
        A(f'v_mul_f32 v{t0}, s{sC1}, v{t0}')
        A(f'v_max_f32 v{t0}, v{vM}, v{t0}')
        A(f'v_sub_f32 v{t1}, v{vM}, v{t0}')
        A(f'v_exp_f32 v{al}, v{t1}')
        A(f'v_mov_b32 v{vM}, v{t0}')
        for e in range(8):
            A(f'v_fma_f32 v{vS+e}, v{vS+e}, s{sC1}, -v{t0}')
        for e in range(8):
            A(f'v_exp_f32 v{vS+e}, v{vS+e}')
        A(f'v_mov_b32_dpp v{vAL}, v{al} quad_perm:[0,0,2,2] row_mask:0xf bank_mask:0xf')
        A(f'v_mov_b32_dpp v{vAL+1}, v{al} quad_perm:[1,1,3,3] row_mask:0xf bank_mask:0xf')
        for u in range(4):
            A(f'v_cvt_pk_bf16_f32 v{vPB+u}, v{vS+2*u}, v{vS+2*u+1}')
        A(f'v_add_f32 v{t1}, v{vS}, v{vS+1}')
        A(f'v_add_f32 v{t2}, v{vS+2}, v{vS+3}')
        A(f'v_add_f32 v{t0}, v{vS+4}, v{vS+5}')
        A(f'v_add_f32 v{t1}, v{t1}, v{t2}')
        A(f'v_add_f32 v{t2}, v{vS+6}, v{vS+7}')
        A(f'v_add_f32 v{t0}, v{t0}, v{t2}')
        A(f'v_add_f32 v{t1}, v{t1}, v{t0}')
        A(f'v_fma_f32 v{vL}, v{vL}, v{al}, v{t1}')
        for u in range(4):
            A(f'v_and_b32 v{vPA+u}, v{vMA}, v{vPB+u}')
            A(f'v_and_b32 v{vPB+u}, v{vMB}, v{vPB+u}')
        for j in range(16):
            A(f'v_pk_mul_f32 {vr(vO + 2*j, 2)}, {vr(vO + 2*j, 2)}, {vr(vAL, 2)}')
        for half in range(2):
            if last:
                A(f's_waitcnt vmcnt({40 if half == 0 else 32})')
            else:
                A('s_waitcnt vmcnt(24)')
            P = vPB if half else vPA

            def perms(j):
                b = vB + 4 * (j % 3)
                t = j >> 1
                sel = sSHI if j & 1 else sSLO
                for u in range(4):
                    lo = vVB + half*32 + 4*(2*u) + t
                    hi = vVB + half*32 + 4*(2*u + 1) + t
                    A(f'v_perm_b32 v{b+u}, v{hi}, v{lo}, s{sel}')

            perms(0)
            for j in range(8):
                if j < 7:
                    perms(j + 1)
                else:
                    A('s_nop 1')
                A(f'v_mfma_f32_16x16x32_bf16 {vr(vO + 4*j)}, {vr(P)}, {vr(vB + 4*(j % 3))}, {vr(vO + 4*j)}')
            if not last:
                for i in range(8):
                    self.v_load(half, i)
        if not last:
            A(f's_add_u32 s{sVO}, s{sVO}, 16384')

    def poll_tail(self, lab, fail):
        A = self.A
        A(f's_sub_u32 s{sTO}, s{sTO}, 1')
        A(f's_cmp_eq_u32 s{sTO}, 0')
        A(f's_cbranch_scc1 {fail}')
        A(f's_cbranch_vccnz {lab}')

    def qkernel(self):
        A = self.A
        self.o += ['.globl ' + QNAME, '.p2align 8', f'.type {QNAME},@function', QNAME + ':']
        self.prologue('Q')
        A('s_cmp_eq_u32 s3, 7')
        A('s_cbranch_scc1 Q_w7')
        self.q_issue()
        self.q_compute(0)
        A('s_waitcnt lgkmcnt(0)')
        A('s_barrier')
        A('s_branch Q_end')
        self.L('Q_w7')
        A(f's_and_b32 s{sU}, s2, 7')
        A(f's_lshl_b32 s{sU}, s{sU}, 5')
        A(f's_lshr_b32 s{sU+1}, s2, 3')
        A(f's_add_u32 s{sU}, s{sU}, s{sU+1}')
        A('s_waitcnt lgkmcnt(0)')
        self.mk_tag()
        A('s_barrier')
        self.q_publish()
        self.L('Q_end')
        A('s_endpgm')

    def main(self):
        A = self.A
        fused = self.mode == 'fused'
        self.o += ['.globl ' + NAME, '.p2align 8', f'.type {NAME},@function', NAME + ':']
        self.stamp()
        self.prologue('M')
        A(f's_mov_b32 s{sTO}, {self.timeout}')
        A('s_cmp_eq_u32 s3, 7')
        A('s_cbranch_scc1 M_w7')
        if fused:
            self.q_issue()
        self.k_issue_all()
        self.v_issue_all()
        if fused:
            self.q_compute(32)
        A('s_waitcnt lgkmcnt(0)')
        self.mk_tag()
        A('s_barrier')
        A('s_branch M_join')
        self.L('M_w7')
        if fused:
            A(f's_and_b32 s{sU}, s2, 7')
            A(f's_lshl_b32 s{sU}, s{sU}, 5')
            A(f's_lshr_b32 s{sU+1}, s2, 3')
            A(f's_add_u32 s{sU}, s{sU}, s{sU+1}')
            A('s_waitcnt lgkmcnt(0)')
            self.mk_tag()
            A('s_barrier')
            self.q_publish()
            self.gen_count()
            self.q_poll_addr()
            self.L('M_qpoll')
            self.q_poll_issue()
            A('s_waitcnt vmcnt(0)')
            self.q_poll_check()
            self.poll_tail('M_qpoll', 'M_end')
            self.q_to_lds()
            self.k_issue_all()
            self.v_issue_all()
            self.gen_update('M')
        else:
            self.q_poll_addr()
            self.q_poll_issue()
            self.k_issue_all()
            self.v_issue_all()
            A('s_waitcnt lgkmcnt(0)')
            self.mk_tag()
            A('s_barrier')
            A('s_waitcnt vmcnt(32)')
            self.q_to_lds()
        self.L('M_join')
        A(f's_mov_b32 s{sC1}, 0x3db8aa3b')
        A(f's_mov_b32 s{sSLO}, 0x05040100')
        A(f's_mov_b32 s{sSHI}, 0x07060302')
        A(f'v_mov_b32 v{vM}, 0xff7fffff')
        A(f'v_mov_b32 v{vL}, 0')
        A(f'v_and_b32 v{vT}, 2, v{vC}')
        A(f'v_cmp_eq_u32 vcc, 0, v{vT}')
        A(f'v_and_b32 v{vT+1}, 1, v{vG_}')
        A(f'v_and_b32 v{vT+2}, 2, v{vG_}')
        A(f'v_cndmask_b32 v{vMA}, 0, -1, vcc')
        A(f'v_not_b32 v{vMB}, v{vMA}')
        A(f'v_cmp_ne_u32 s[{sMG1}:{sMG1+1}], 0, v{vT+1}')
        A(f'v_cmp_ne_u32 s[{sMG2}:{sMG2+1}], 0, v{vT+2}')
        for j in range(32):
            A(f'v_mov_b32 v{vO+j}, 0')
        A(f'v_and_b32 v{vT}, 1, v{vC}')
        A(f'v_lshlrev_b32 v{vT}, 9, v{vT}')
        A(f'v_lshl_add_u32 v{vT}, v{vG_}, 4, v{vT}')
        A('s_waitcnt lgkmcnt(0)')
        A('s_barrier')
        for s in range(8):
            A(f'ds_read_b128 {ar(4*s)}, v{vT} offset:{L_Q + 64*s}')
        self.stamp()
        A(f's_mov_b32 s{sCNT}, 7')
        A('s_waitcnt lgkmcnt(0)')
        self.L('M_loop')
        self.tile(False)
        A(f's_sub_u32 s{sCNT}, s{sCNT}, 1')
        A(f's_cmp_lg_u32 s{sCNT}, 0')
        A('s_cbranch_scc1 M_loop')
        self.tile(True)
        self.stamp()
        if not fused:
            pass
        self.xlane(vL, vT, 'v_add_f32')
        for j in range(8):
            A(f'v_cndmask_b32 v{vT+1}, v{vO+4*j}, v{vO+4*j+1}, s[{sMG1}:{sMG1+1}]')
            A(f'v_cndmask_b32 v{vT+2}, v{vO+4*j+2}, v{vO+4*j+3}, s[{sMG1}:{sMG1+1}]')
            A(f'v_cndmask_b32 v{vS+j}, v{vT+1}, v{vT+2}, s[{sMG2}:{sMG2+1}]')
        A(f'v_and_b32 v{vT+1}, 1, v{vG_}')
        A(f'v_lshlrev_b32 v{vT+1}, 10, v{vT+1}')
        A(f'v_lshrrev_b32 v{vT+2}, 1, v{vG_}')
        A(f'v_lshl_add_u32 v{vT+1}, v{vT+2}, 9, v{vT+1}')
        A(f'v_lshl_add_u32 v{vT+1}, v{vC}, 5, v{vT+1}')
        A(f's_lshl_b32 s{sU}, s3, 11')
        A(f'v_add_u32 v{vT+1}, s{sU}, v{vT+1}')
        A(f'ds_write_b128 v{vT+1}, {vr(vS)} offset:{L_O}')
        A(f'ds_write_b128 v{vT+1}, {vr(vS+4)} offset:{L_O+16}')
        A(f'v_lshlrev_b32 v{vT+2}, 6, v{vLANE}')
        A(f's_lshl_b32 s{sU}, s3, 3')
        A(f'v_add_u32 v{vT+2}, s{sU}, v{vT+2}')
        A(f'v_mov_b32 v{vT+5}, v{vM}')
        A(f'v_mov_b32 v{vT+6}, v{vL}')
        A(f's_mov_b64 s[{sEX}:{sEX+1}], exec')
        A('s_mov_b64 exec, 3')
        A(f'ds_write_b64 v{vT+2}, {vr(vT+5, 2)} offset:{L_ML}')
        A(f's_mov_b64 exec, s[{sEX}:{sEX+1}]')
        A(f's_lshl_b32 s{sU}, s3, 8')
        A(f'v_lshlrev_b32 v{vT+1}, 2, v{vLANE}')
        A(f'v_add_u32 v{vT+1}, s{sU}, v{vT+1}')
        A(f's_lshr_b32 s{sU+1}, s3, 2')
        A(f's_lshl_b32 s{sU+1}, s{sU+1}, 6')
        A(f'v_mov_b32 v{vT+2}, s{sU+1}')
        A('s_waitcnt lgkmcnt(0)')
        A('s_barrier')
        ML = vO
        OW = vO + 16
        for q in range(4):
            A(f'ds_read_b128 {vr(ML + 4*q)}, v{vT+2} offset:{L_ML + 16*q}')
        for w in range(8):
            A(f'ds_read_b32 v{OW+w}, v{vT+1} offset:{L_O + 2048*w}')
        A(f's_lshl_b32 s{sU}, s2, 12')
        A(f's_add_u32 s{sU}, s{sU}, {WS_P}')
        A(f'v_lshlrev_b32 v{vT+1}, 1, v{vT+1}')
        A(f's_lshl_b32 s{sU+2}, s2, 6')
        A(f's_lshr_b32 s{sU+1}, s{sU+1}, 2')
        A(f's_add_u32 s{sU+2}, s{sU+2}, s{sU+1}')
        A(f's_add_u32 s{sU+2}, s{sU+2}, {WS_ML}')
        A('s_waitcnt lgkmcnt(8)')
        mx = vS
        A(f'v_max3_f32 v{mx}, v{ML}, v{ML+2}, v{ML+4}')
        A(f'v_max3_f32 v{mx}, v{mx}, v{ML+6}, v{ML+8}')
        A(f'v_max3_f32 v{mx}, v{mx}, v{ML+10}, v{ML+12}')
        A(f'v_max_f32 v{mx}, v{mx}, v{ML+14}')
        for w in range(8):
            A(f'v_sub_f32 v{ML+2*w}, v{ML+2*w}, v{mx}')
        for w in range(8):
            A(f'v_exp_f32 v{ML+2*w}, v{ML+2*w}')
        A(f'v_mov_b32 v{mx+1}, s{sTAG}')
        A(f'v_mov_b32 v{mx+3}, s{sTAG}')
        A(f'v_mov_b32 v{mx+5}, s{sTAG}')
        A(f'v_mul_f32 v{mx+2}, v{ML}, v{ML+1}')
        for w in range(1, 8):
            A(f'v_fmac_f32 v{mx+2}, v{ML+2*w}, v{ML+2*w+1}')
        A('s_waitcnt vmcnt(0) lgkmcnt(0)')
        A(f'v_mul_f32 v{mx+4}, v{ML}, v{OW}')
        for w in range(1, 8):
            A(f'v_fmac_f32 v{mx+4}, v{ML+2*w}, v{OW+w}')
        A(f'buffer_store_dwordx2 {vr(mx+4, 2)}, v{vT+1}, {srd(sWS)}, s{sU} offen sc1')
        A(f's_and_b32 s{sU+1}, s3, 3')
        A(f's_cmp_lg_u32 s{sU+1}, 0')
        A('s_cbranch_scc1 M_noml')
        A(f'v_mov_b32 v{vT+2}, 0')
        A(f's_mov_b64 s[{sEX}:{sEX+1}], exec')
        A('s_mov_b64 exec, 1')
        A(f'buffer_store_dwordx4 {vr(mx)}, v{vT+2}, {srd(sWS)}, s{sU+2} offen sc1')
        A(f's_mov_b64 exec, s[{sEX}:{sEX+1}]')
        self.L('M_noml')
        self.stamp()
        A('s_cmp_eq_u32 s3, 7')
        A('s_cbranch_scc1 M_w7b')
        for ks in range(4):
            for t in range(2):
                for u in range(4):
                    lo = vKB + ks*16 + 2*(2*u) + t
                    hi = vKB + ks*16 + 2*(2*u+1) + t
                    A(f'v_perm_b32 v{vVB + ks*16 + (2*t)*4 + u}, v{hi}, v{lo}, s{sSLO}')
                    A(f'v_perm_b32 v{vVB + ks*16 + (2*t+1)*4 + u}, v{hi}, v{lo}, s{sSHI}')
        A(f'v_lshlrev_b32 v{vT}, 4, v{vG_}')
        A(f's_lshr_b32 s{sU}, s2, 5')
        A(f's_mul_i32 s{sU}, s{sU}, 7')
        A(f's_add_u32 s{sU}, s{sU}, s3')
        A(f's_lshl_b32 s{sU}, s{sU}, 5')
        A(f's_and_b32 s{sU+1}, s2, 31')
        A(f's_add_u32 s{sU}, s{sU}, s{sU+1}')
        A(f's_lshl_b32 s{sU}, s{sU}, 9')
        A(f's_add_u32 s{sU}, s{sU}, {WS_Y}')
        A(f'v_lshlrev_b32 v{vT+1}, 5, v{vC}')
        A(f'v_lshl_add_u32 v{vT+1}, v{vG_}, 3, v{vT+1}')
        A(f'v_mov_b32 v{vT+6}, s{sTAG}')
        A('s_barrier')
        AF = vO
        Y = vO + 16
        for ks in range(4):
            A(f'ds_read_b128 {vr(AF + 4*ks)}, v{vT} offset:{L_o + 64*ks}')
        for ks in range(4):
            A(f's_waitcnt lgkmcnt({3-ks})')
            for jj in range(4):
                c = '0' if ks == 0 else vr(Y + 4*jj)
                A(f'v_mfma_f32_16x16x32_bf16 {vr(Y + 4*jj)}, {vr(AF + 4*ks)}, {vr(vVB + ks*16 + jj*4)}, {c}')
        A('s_nop 7')
        A(f'v_cndmask_b32 v{vT+2}, v{Y}, v{Y+4}, s[{sMG1}:{sMG1+1}]')
        A(f'v_cndmask_b32 v{vT+3}, v{Y+8}, v{Y+12}, s[{sMG1}:{sMG1+1}]')
        A(f'v_cndmask_b32 v{vT+5}, v{vT+2}, v{vT+3}, s[{sMG2}:{sMG2+1}]')
        A(f'buffer_store_dwordx2 {vr(vT+5, 2)}, v{vT+1}, {srd(sWS)}, s{sU} offen sc1')
        if self.ts:
            self.nts = 4
            self.stamp()
            self.stamp()
        A('s_branch M_fin')
        self.L('M_w7b')
        if not fused:
            self.gen_count()
        D = vKB
        A(f's_and_b32 s{sU}, s2, 0xfc')
        A(f's_and_b32 s{sU+1}, s2, 3')
        A(f's_lshl_b32 s{sU+2}, s{sU}, 12')
        A(f's_lshl_b32 s{sU+3}, s{sU+1}, 10')
        A(f's_add_u32 s{sU+2}, s{sU+2}, s{sU+3}')
        A(f's_add_u32 s{sU+2}, s{sU+2}, {WS_P}')
        A(f's_add_u32 s{sU+3}, s{sU+2}, 4096')
        A(f's_add_u32 s{sU+5}, s{sU+2}, 8192')
        A(f's_add_u32 s{sU+6}, s{sU+2}, 12288')
        A(f's_lshl_b32 s{sU}, s{sU}, 6')
        A(f's_lshr_b32 s{sU+1}, s{sU+1}, 1')
        A(f's_lshl_b32 s{sU+1}, s{sU+1}, 4')
        A(f's_add_u32 s{sU}, s{sU}, s{sU+1}')
        A(f's_add_u32 s{sU}, s{sU}, {WS_ML}')
        A(f'v_lshlrev_b32 v{vT}, 4, v{vLANE}')
        A(f'v_mov_b32 v{vT+1}, 0')
        self.L('M_p1')
        for src, so in enumerate((sU+2, sU+3, sU+5, sU+6)):
            A(f'buffer_load_dwordx4 {vr(D + 4*src)}, v{vT}, {srd(sWS)}, s{so} offen sc1')
        for src in range(4):
            A(f'buffer_load_dwordx4 {vr(D + 16 + 4*src)}, v{vT+1}, {srd(sWS)}, s{sU} offen offset:{64*src} sc1')
        A('s_waitcnt vmcnt(0)')
        for q in range(16):
            A(f'v_xor_b32 v{D + 2*q + 1}, s{sTAG}, v{D + 2*q + 1}')
        A(f'v_or3_b32 v{vT+2}, v{D+1}, v{D+3}, v{D+5}')
        for q in range(3, 15, 2):
            A(f'v_or3_b32 v{vT+2}, v{vT+2}, v{D + 2*q + 1}, v{D + 2*q + 3}')
        A(f'v_or_b32 v{vT+2}, v{vT+2}, v{D+31}')
        A(f'v_cmp_ne_u32 vcc, 0, v{vT+2}')
        self.poll_tail('M_p1', 'M_end')
        Mr = lambda s: D + 16 + 4*s
        Lr = lambda s: D + 16 + 4*s + 2
        A(f'v_max3_f32 v{vT+2}, v{Mr(0)}, v{Mr(1)}, v{Mr(2)}')
        A(f'v_max_f32 v{vT+2}, v{vT+2}, v{Mr(3)}')
        for s in range(4):
            A(f'v_sub_f32 v{Mr(s)}, v{Mr(s)}, v{vT+2}')
        for s in range(4):
            A(f'v_exp_f32 v{Mr(s)}, v{Mr(s)}')
        A('s_nop 0')
        A(f'v_mul_f32 v{vT+2}, v{Mr(0)}, v{Lr(0)}')
        A(f'v_mul_f32 v{vT+3}, v{Mr(0)}, v{D}')
        A(f'v_mul_f32 v{vT+4}, v{Mr(0)}, v{D+2}')
        for s in range(1, 4):
            A(f'v_fmac_f32 v{vT+2}, v{Mr(s)}, v{Lr(s)}')
            A(f'v_fmac_f32 v{vT+3}, v{Mr(s)}, v{D+4*s}')
            A(f'v_fmac_f32 v{vT+4}, v{Mr(s)}, v{D+4*s+2}')
        A(f'v_rcp_f32 v{vT+2}, v{vT+2}')
        A(f'v_lshlrev_b32 v{vT}, 2, v{vLANE}')
        A(f'v_mul_f32 v{vT+3}, v{vT+3}, v{vT+2}')
        A(f'v_mul_f32 v{vT+4}, v{vT+4}, v{vT+2}')
        A(f'v_cvt_pk_bf16_f32 v{vT+3}, v{vT+3}, v{vT+4}')
        A(f'ds_write_b32 v{vT}, v{vT+3} offset:{L_o}')
        A('s_waitcnt lgkmcnt(0)')
        A('s_barrier')
        if self.ts:
            self.nts = 4
            self.stamp()
        if not fused:
            self.gen_update('M')
        A(f's_and_b32 s{sU+1}, s2, 31')
        A(f's_cmp_ge_u32 s{sU+1}, 7')
        A('s_cbranch_scc1 M_fin7')
        A(f's_lshr_b32 s{sU}, s2, 5')
        A(f's_mul_i32 s{sU+2}, s{sU}, 7')
        A(f's_add_u32 s{sU+2}, s{sU+2}, s{sU+1}')
        A(f's_lshl_b32 s{sU+7}, s{sU+2}, 7')
        A(f's_lshl_b32 s{sU+2}, s{sU+2}, 14')
        A(f's_add_u32 s{sU+2}, s{sU+2}, {WS_Y}')
        A(f's_add_u32 s{sU+3}, s{sU+2}, 4096')
        A(f's_add_u32 s{sU+5}, s{sU+2}, 8192')
        A(f's_add_u32 s{sU+6}, s{sU+2}, 12288')
        A(f'v_lshlrev_b32 v{vT}, 3, v{vLANE}')
        A(f'v_lshlrev_b32 v{vT+1}, 1, v{vLANE}')
        E = vVB
        self.L('M_p2')
        for src in range(32):
            so = (sU+2, sU+3, sU+5, sU+6)[src >> 3]
            A(f'buffer_load_dwordx2 {vr(E + 2*src, 2)}, v{vT}, {srd(sWS)}, s{so} offen offset:{(src & 7)*512} sc1')
        A('s_waitcnt vmcnt(0)')
        for q in range(32):
            A(f'v_xor_b32 v{E + 2*q + 1}, s{sTAG}, v{E + 2*q + 1}')
        A(f'v_or3_b32 v{vT+2}, v{E+1}, v{E+3}, v{E+5}')
        for q in range(3, 31, 2):
            A(f'v_or3_b32 v{vT+2}, v{vT+2}, v{E + 2*q + 1}, v{E + 2*q + 3}')
        A(f'v_or_b32 v{vT+2}, v{vT+2}, v{E+63}')
        A(f'v_cmp_ne_u32 vcc, 0, v{vT+2}')
        self.poll_tail('M_p2', 'M_end')
        for st in (1, 2, 4, 8, 16):
            for q in range(0, 32, 2*st):
                A(f'v_add_f32 v{E + 2*q}, v{E + 2*q}, v{E + 2*(q+st)}')
        A(f'v_cvt_pk_bf16_f32 v{vT+2}, v{E}, v{E}')
        A(f'buffer_store_short v{vT+2}, v{vT+1}, {srd(sOUT)}, s{sU+7} offen')
        self.L('M_fin7')
        self.stamp()
        self.L('M_fin')
        if self.ts:
            A('s_waitcnt lgkmcnt(0)')
            A(f's_lshl_b32 s{sU}, s2, 3')
            A(f's_add_u32 s{sU}, s{sU}, s3')
            A(f's_lshl_b32 s{sU}, s{sU}, 6')
            A(f's_add_u32 s{sU}, s{sU}, {WS_T}')
            A(f'v_mov_b32 v{vT}, 0')
            A('s_mov_b64 exec, 1')
            for i in range(6):
                A(f'v_mov_b32 v{vS}, s{sTS + 2*i}')
                A(f'v_mov_b32 v{vS+1}, s{sTS + 2*i + 1}')
                A(f'buffer_store_dwordx2 {vr(vS, 2)}, v{vT}, {srd(sWS)}, s{sU} offen offset:{8*i}')
                A('s_nop 1')
        self.L('M_end')
        A('s_endpgm')

    def desc(self, name):
        self.o += [f'.amdhsa_kernel {name}',
                   f'  .amdhsa_next_free_vgpr {NV + NA}',
                   '  .amdhsa_next_free_sgpr 96',
                   f'  .amdhsa_accum_offset {NV}',
                   '  .amdhsa_group_segment_fixed_size 0',
                   '  .amdhsa_kernarg_size 64',
                   '  .amdhsa_user_sgpr_count 2',
                   '  .amdhsa_user_sgpr_kernarg_segment_ptr 1',
                   '  .amdhsa_system_sgpr_workgroup_id_x 1',
                   '  .amdhsa_float_denorm_mode_32 3',
                   '.end_amdhsa_kernel']

    def build(self):
        hdr = ['; GQA decode attention block (q-proj + flash-decoding + out-proj), generated by bench/gen.py']
        if self.mode == 'fused':
            hdr.append(f'; @launch grid=(256,1,1) block=(512,1,1) lds={LDS_SIZE}')
        else:
            hdr.append(f'; @launch kernel={QNAME} grid=(256,1,1) block=(512,1,1) lds={LDS_SIZE}')
            hdr.append(f'; @launch kernel={NAME} grid=(256,1,1) block=(512,1,1) lds={LDS_SIZE}')
        self.o = hdr + ['.amdgcn_target "amdgcn-amd-amdhsa--gfx950"', '.text']
        if self.mode != 'fused':
            self.qkernel()
        self.main()
        self.o += ['.section .rodata,"a"', '.p2align 6']
        if self.mode != 'fused':
            self.desc(QNAME)
            self.o.append('.p2align 6')
        self.desc(NAME)
        return '\n'.join(self.o) + '\n'


if __name__ == '__main__':
    kw = {}
    for a in sys.argv[2:]:
        k, v = a.split('=')
        kw[k] = int(v) if v.isdigit() else v
    open(sys.argv[1], 'w').write(Gen(**kw).build())
```

```python
import re
import sys

NAME = 'standalone__gqa_block_cached__sampling_kernel'

WS_G = 0
WS_QP = 0x300000
WS_P = 0x40000
WS_ML = 0x140000
WS_Y = 0x180000
WS_T = 0x280000
WS_SIZE = 0x400000

L_WQ = 0x6a00
L_H = 0x3800
L_o = 0x5c00
L_FL = 0x6500
L_Q = 0x6600
LDS_SIZE = 0xaa00

sK, sV, sWS, sX, sWQ, sWO, sOUT = 20, 24, 28, 32, 36, 40, 44
sTAG, sG, sC1, sSLO, sSHI, sKO, sVO, sT0, sT1, sCNT, sTO = 52, 53, 54, 55, 56, 57, 58, 59, 60, 61, 62
sMG1, sMG2, sEX = 64, 66, 68
sU = 70
sTS = 80

vLANE, vKOFF, vVOFF, vM, vL, vMA, vMB = 0, 1, 2, 3, 4, 5, 6
vT = 7
vS = 16
vPA, vPB = 24, 28
vB = 32
vAL = 44
vC, vG_ = 46, 47
vV = (48, 112)
vO = 176
NV = 208
aK = (0, 64)
aQ = 128
NA = 160


def srd(n):
    return f's[{n}:{n+3}]'


def vr(n, k=4):
    return f'v[{n}:{n+k-1}]'


def ar(n, k=4):
    return f'a[{n}:{n+k-1}]'


class Gen:
    def __init__(self, ts=0, timeout=1 << 18, kf=1, vf=0, sd=32, notail=0, noq=0, nowo=0, wo3early=1, nh=2, wolate=1, nocomp=0, noprod=0, qnt=0, nobar0=0, nopoll=0, nox=0, nowq=0, nost=0, noat=0, pollstart=1, psleep=0, nogather=0, p2wait=0, qdelay=1):
        self.o = []
        self.ts, self.timeout, self.kf, self.vf, self.sd = ts, timeout, kf, vf, sd
        self.notail, self.noq, self.nowo, self.wo3early, self.nh = notail, noq, nowo, wo3early, nh
        self.uid = 0
        self.qdelay = qdelay
        self.nogather, self.p2wait = nogather, p2wait
        self.pollstart, self.psleep = pollstart, psleep
        self.nost, self.noat = nost, noat
        self.qnt, self.nobar0, self.nopoll, self.nox, self.nowq = qnt, nobar0, nopoll, nox, nowq
        self.wolate, self.nocomp, self.noprod = wolate, nocomp, noprod

    def A(self, s):
        if s.startswith('buffer_'):
            m = re.search(r'offset:(\d+)', s)
            assert not m or int(m.group(1)) < 4096, s
        self.o.append('    ' + s)

    def L(self, s):
        self.o.append(s + ':')

    def lab(self, p):
        self.uid += 1
        return f'{p}_{self.uid}'

    def stamp(self, i):
        if self.ts:
            n = sTS + 2 * i
            self.A(f's_memrealtime s[{n}:{n+1}]')

    def prologue(self):
        A = self.A
        A('s_cmp_ge_u32 s2, 256')
        A('s_cbranch_scc1 M_end')
        A('s_load_dwordx16 s[4:19], s[0:1], 0')
        A(f'v_lshrrev_b32 v{vT}, 6, v0')
        A(f'v_and_b32 v{vLANE}, 63, v0')
        A(f'v_readfirstlane_b32 s3, v{vT}')
        A(f'v_mov_b32 v{vT+1}, {L_FL}')
        A(f'v_mov_b32 v{vS}, 0')
        A(f'v_mov_b32 v{vS+1}, 0')
        A(f'v_mov_b32 v{vS+2}, 0')
        A(f'v_mov_b32 v{vS+3}, 0')
        A(f'ds_write_b128 v{vT+1}, {vr(vS)}')
        A(f'ds_write_b128 v{vT+1}, {vr(vS)} offset:16')
        A(f'v_and_b32 v{vC}, 15, v{vLANE}')
        A(f'v_lshrrev_b32 v{vG_}, 4, v{vLANE}')
        A(f'v_lshlrev_b32 v{vKOFF}, 9, v{vC}')
        A(f'v_lshl_add_u32 v{vKOFF}, v{vG_}, 4, v{vKOFF}')
        A(f'v_lshlrev_b32 v{vVOFF}, 11, v{vG_}')
        A(f'v_lshl_add_u32 v{vVOFF}, v{vC}, 4, v{vVOFF}')
        A(f's_lshl_b32 s{sKO}, s2, 20')
        A(f's_lshl_b32 s{sT0}, s3, 15')
        A(f's_add_u32 s{sKO}, s{sKO}, s{sT0}')
        A(f's_mov_b32 s{sVO}, s{sKO}')
        for n, size in ((sK, 0x10000000), (sV, 0x10000000), (sWS, WS_SIZE), (sX, 8 * 448 * 2), (sWQ, 448 * 4096 * 2),
                        (sWO, 4096 * 448 * 2), (sOUT, 8 * 448 * 2)):
            A(f's_mov_b32 s{n+2}, {size:#x}')
            A(f's_mov_b32 s{n+3}, 0x00020000')
        A(f's_mov_b32 s{sTO}, {self.timeout}')
        A(f's_mov_b32 s{sC1}, 0x3db8aa3b')
        A(f's_mov_b32 s{sSLO}, 0x05040100')
        A(f's_mov_b32 s{sSHI}, 0x07060302')
        A('s_waitcnt lgkmcnt(0)')
        for n, p in ((sX, 4), (sWQ, 10), (sK, 6), (sV, 8), (sWS, 18), (sWO, 12), (sOUT, 14)):
            A(f's_mov_b64 s[{n}:{n+1}], s[{p}:{p+1}]')

    def masks(self):
        A = self.A
        A(f'v_and_b32 v{vT+1}, 1, v{vG_}')
        A(f'v_and_b32 v{vT+2}, 2, v{vG_}')
        A(f'v_cmp_ne_u32 s[{sMG1}:{sMG1+1}], 0, v{vT+1}')
        A(f'v_cmp_ne_u32 s[{sMG2}:{sMG2+1}], 0, v{vT+2}')

    def wait_flag(self, word, also_tag=False):
        A = self.A
        lw, ok = self.lab('W'), self.lab('K')
        A(f'v_mov_b32 v{vT+1}, {L_FL}')
        A(f's_mov_b32 s{sU+5}, {self.timeout * 8}')
        self.L(lw)
        A(f'ds_read_b128 {vr(vB)}, v{vT+1} offset:{(word >> 2) * 16}')
        A(f's_sub_u32 s{sU+5}, s{sU+5}, 1')
        A(f's_cmp_eq_u32 s{sU+5}, 0')
        A('s_cbranch_scc1 M_end')
        A('s_waitcnt lgkmcnt(0)')
        A(f'v_readfirstlane_b32 s{sU+9}, v{vB+(word & 3)}')
        if also_tag:
            A(f'v_readfirstlane_b32 s{sTAG}, v{vB+1}')
        else:
            A('s_nop 0')
        A(f's_cmp_lg_u32 s{sU+9}, 0')
        A(f's_cbranch_scc1 {ok}')
        A('s_sleep 1')
        A(f's_branch {lw}')
        self.L(ok)

    def set_flag(self, word):
        A = self.A
        A(f'v_mov_b32 v{vT+1}, {L_FL + 4*word}')
        A(f'v_mov_b32 v{vT+2}, 1')
        A(f'ds_write_b32 v{vT+1}, v{vT+2}')

    QX, QB = 48, 112

    def q_issue(self):
        A = self.A
        A(f's_load_dword s{sG}, s[18:19], {WS_G}')
        A(f's_and_b32 s{sU}, s2, 3')
        A(f's_lshl_b32 s{sU+2}, s{sU}, 2')
        A(f's_cmp_eq_u32 s{sU}, 3')
        A(f's_cselect_b32 s{sU+2}, 11, s{sU+2}')
        A(f's_cmp_ge_u32 s{sU}, 2')
        A(f's_cselect_b32 s{sU+4}, 0x40000000, 0')
        A(f's_lshr_b32 s{sU+1}, s2, 2')
        A(f's_lshl_b32 s{sU+1}, s{sU+1}, 7')
        A(f's_lshl_b32 s{sU+3}, s{sU+2}, 18')
        A(f's_add_u32 s{sU+1}, s{sU+1}, s{sU+3}')
        A(f's_lshl_b32 s{sU+2}, s{sU+2}, 6')
        A(f'v_lshrrev_b32 v{vT}, 3, v{vLANE}')
        A(f'v_lshlrev_b32 v{vT}, 13, v{vT}')
        A(f'v_and_b32 v{vT+1}, 7, v{vLANE}')
        A(f'v_lshl_add_u32 v{vT}, v{vT+1}, 4, v{vT}')
        A(f'v_and_b32 v{vT+1}, 7, v{vC}')
        A(f'v_mul_u32_u24 v{vT+1}, 896, v{vT+1}')
        A(f'v_lshl_add_u32 v{vT+1}, v{vG_}, 4, v{vT+1}')
        for n in range(16):
            A(f's_mov_b32 m0, {L_WQ + n*1024}')
            A(f's_add_u32 s{sU+3}, s{sU+1}, {n*65536}')
            if n >= 12:
                A(f's_add_u32 s{sU+3}, s{sU+3}, s{sU+4}')
            if not self.nowq:
                A(f'buffer_load_dwordx4 v{vT}, {srd(sWQ)}, s{sU+3} offen nt lds')
        A(f's_add_u32 s{sU+3}, s{sU+2}, s{sU+4}')
        for kt in range(4):
            A(f'buffer_load_dwordx4 {vr(self.QX + 4*kt)}, v{vT+1}, {srd(sX)}, s{sU+3 if kt == 3 else sU+2} offen offset:{64*kt}')

    def q_compute(self):
        A = self.A
        QX, QB = self.QX, self.QB
        DQ = vO
        A(f'v_lshrrev_b32 v{vT+2}, 2, v{vC}')
        A(f'v_lshl_add_u32 v{vT+2}, v{vG_}, 3, v{vT+2}')
        A(f'v_lshlrev_b32 v{vT+2}, 7, v{vT+2}')
        A(f'v_and_b32 v{vT+3}, 3, v{vC}')
        A(f'v_lshl_add_u32 v{vT+2}, v{vT+3}, 3, v{vT+2}')
        A(f'v_and_b32 v{vT+3}, 7, v{vC}')
        A(f'v_lshlrev_b32 v{vT+3}, 15, v{vT+3}')
        A(f'v_lshrrev_b32 v{vT+4}, 3, v{vC}')
        A(f'v_cmp_ne_u32 s[{sMG1}:{sMG1+1}], 0, v{vT+4}')
        A(f'v_lshl_add_u32 v{vT+3}, v{vT+4}, 6, v{vT+3}')
        A(f'v_lshl_add_u32 v{vT+3}, v{vG_}, 4, v{vT+3}')
        A(f's_lshl_b32 s{sU+1}, s{sU}, 18')
        A(f's_lshr_b32 s{sU+2}, s2, 2')
        A(f's_lshl_b32 s{sU+2}, s{sU+2}, 9')
        A(f's_add_u32 s{sU+1}, s{sU+1}, s{sU+2}')
        A(f's_add_u32 s{sU+1}, s{sU+1}, {WS_QP}')
        A(f's_lshr_b32 s{sU+4}, s2, 2')
        A(f's_lshl_b32 s{sU+4}, s{sU+4}, 12')
        A(f's_add_u32 s{sU+4}, s{sU+4}, {WS_QP}')
        A(f'v_lshlrev_b32 v{vT}, 4, v{vLANE}')
        A(f'v_lshrrev_b32 v{vT+7}, 5, v{vLANE}')
        A(f'v_lshlrev_b32 v{vT+7}, 7, v{vT+7}')
        A(f'v_bfe_u32 v{vT+4}, v{vLANE}, 2, 1')
        A(f'v_lshl_add_u32 v{vT+7}, v{vT+4}, 6, v{vT+7}')
        A(f'v_bfe_u32 v{vT+4}, v{vLANE}, 4, 1')
        A(f'v_lshl_add_u32 v{vT+7}, v{vT+4}, 5, v{vT+7}')
        A(f'v_and_b32 v{vT+4}, 3, v{vLANE}')
        A(f'v_lshl_add_u32 v{vT+7}, v{vT+4}, 3, v{vT+7}')
        A(f'v_bfe_u32 v{vT+4}, v{vLANE}, 3, 1')
        A(f'v_lshl_add_u32 v{vT+7}, v{vT+4}, 2, v{vT+7}')
        A('s_waitcnt lgkmcnt(0)')
        A(f's_add_u32 s{sG}, s{sG}, 1')
        A(f's_mul_i32 s{sTAG}, s{sG}, 0x9e3779b1')
        A(f's_xor_b32 s{sTAG}, s{sTAG}, 0x5bd1e995')
        A(f'v_mov_b32 v{vT+6}, s{sTAG}')
        for q in range(8):
            A(f'v_mov_b32 v{vS + 2*q + 1}, s{sTAG}')
        A('s_waitcnt vmcnt(4)')
        self.stamp(3)
        for kt in range(4):
            for ct in range(4):
                r = QB + (kt*4 + ct)*4
                A(f'ds_read_b64_tr_b16 {vr(r, 2)}, v{vT+2} offset:{L_WQ + kt*4096 + ct*32}')
                A(f'ds_read_b64_tr_b16 {vr(r + 2, 2)}, v{vT+2} offset:{L_WQ + kt*4096 + ct*32 + 512}')
        A('s_waitcnt vmcnt(0)')
        for kt in range(4):
            for ct in range(4):
                n = kt*4 + ct
                A(f's_waitcnt lgkmcnt({min(15, 30 - 2*n)})')
                c = '0' if kt == 0 else vr(DQ + 4*ct)
                A(f'v_mfma_f32_16x16x32_bf16 {vr(DQ + 4*ct)}, {vr(QB + 4*n)}, {vr(QX + 4*kt)}, {c}')
        A('s_nop 7')
        for st in range(2):
            for r in range(4):
                A(f'v_cndmask_b32 v{vS + 8*st + 2*r}, v{DQ + 4*st + r}, v{DQ + 8 + 4*st + r}, s[{sMG1}:{sMG1+1}]')
                if r & 1:
                    A(f'buffer_store_dwordx4 {vr(vS + 8*st + 2*(r-1))}, v{vT+3}, {srd(sWS)}, s{sU+1} offen offset:{128*(2*st + (r >> 1))} sc1')

    def q_gather(self):
        A = self.A
        F = vV[0]
        if self.qdelay:
            self.wait_flag(2)
        self.L('M_qpoll')
        for kq in range(4):
            A(f's_add_u32 s{sU+1}, s{sU+4}, {kq*262144}')
            for n in range(4):
                A(f'buffer_load_dwordx4 {vr(F + 16*kq + 4*n)}, v{vT}, {srd(sWS)}, s{sU+1} offen offset:{1024*n} sc1')
        A(f'v_mov_b32 v{vT+8}, {L_FL}')
        A(f'v_mov_b32 v{vT+5}, 1')
        A('s_waitcnt vmcnt(0)')
        for q in range(32):
            A(f'v_xor_b32 v{F + 2*q + 1}, s{sTAG}, v{F + 2*q + 1}')
        A(f'v_or3_b32 v{vT+2}, v{F+1}, v{F+3}, v{F+5}')
        for q in range(3, 31, 2):
            A(f'v_or3_b32 v{vT+2}, v{vT+2}, v{F + 2*q + 1}, v{F + 2*q + 3}')
        A(f'v_or_b32 v{vT+2}, v{vT+2}, v{F+63}')
        A(f'v_cmp_ne_u32 vcc, 0, v{vT+2}')
        self.poll_tail('M_qpoll')
        for e in range(8):
            A(f'v_add_f32 v{F+2*e}, v{F+2*e}, v{F+16+2*e}')
            A(f'v_add_f32 v{F+32+2*e}, v{F+32+2*e}, v{F+48+2*e}')
        for e in range(8):
            A(f'v_add_f32 v{F+2*e}, v{F+2*e}, v{F+32+2*e}')
        for n in range(4):
            A(f'v_cvt_pk_bf16_f32 v{vS+n}, v{F+4*n}, v{F+4*n+2}')
            A(f'ds_write_b32 v{vT+7}, v{vS+n} offset:{L_Q + 256*n}')
        A(f'ds_write_b64 v{vT+8}, {vr(vT+5, 2)}')

    def poll_tail(self, lab):
        A = self.A
        A(f's_sub_u32 s{sTO}, s{sTO}, 1')
        A(f's_cmp_eq_u32 s{sTO}, 0')
        A('s_cbranch_scc1 M_end')
        A(f's_cbranch_vccnz {lab}')

    def k_load(self, buf, j):
        so = f's{sT0}' if j >> 3 else f's{sKO}'
        self.A(f'buffer_load_dwordx4 {ar(aK[buf] + 4*j)}, v{vKOFF}, {srd(sK)}, {so} offen offset:{(j & 7)*64} nt')

    def v_load(self, buf, half, i):
        so = f's{sT1}' if i >> 2 else f's{sVO}'
        self.A(f'buffer_load_dwordx4 {vr(vV[buf] + half*32 + 4*i)}, v{vVOFF}, {srd(sV)}, {so} offen '
               f'offset:{(i & 3)*512 + half*256} nt')

    def k_issue(self, buf, step=16384):
        self.A(f's_add_u32 s{sT0}, s{sKO}, 8192')
        for j in range(16):
            self.k_load(buf, j)
        self.A(f's_add_u32 s{sKO}, s{sKO}, {step}')

    def v_issue(self, buf, step=16384):
        self.A(f's_add_u32 s{sT1}, s{sVO}, 8192')
        if self.vf:
            for half in range(2):
                for i in range(8):
                    self.v_load(buf, half, i)
        else:
            for i in range(8):
                for half in range(2):
                    self.v_load(buf, half, i)
        self.A(f's_add_u32 s{sVO}, s{sVO}, {step}')

    def xlane(self, t0, t1, op):
        A = self.A
        for ins in ('v_permlane16_swap_b32', 'v_permlane32_swap_b32'):
            A(f'v_mov_b32 v{t1}, v{t0}')
            A('s_nop 1')
            A(f'{ins} v{t0}, v{t1}')
            A('s_nop 0')
            A(f'{op} v{t0}, v{t0}, v{t1}')

    def tile(self, buf, refill, wk, wv):
        A0 = self.A
        def A(x):
            if self.nocomp and (x.startswith('v_') or x.startswith('s_nop')):
                return
            A0(x)
        A(f's_waitcnt vmcnt({wk})')
        kf = self.kf and refill
        if kf:
            A(f's_add_u32 s{sT0}, s{sKO}, 8192')
        for j in range(16):
            T, s = j >> 3, j & 7
            c = '0' if s == 0 else vr(vS + 4*T)
            A(f'v_mfma_f32_16x16x32_bf16 {vr(vS + 4*T)}, {ar(aK[buf] + 4*j)}, {ar(aQ + 4*s)}, {c}')
            if kf:
                self.k_load(buf, j)
        if kf:
            A(f's_add_u32 s{sKO}, s{sKO}, 16384')
            A('s_nop 5')
        elif refill:
            self.k_issue(buf)
        else:
            A('s_nop 6')
        t0, t1, t2, al = vT, vT + 1, vT + 2, vT + 3
        A(f'v_max3_f32 v{t0}, v{vS}, v{vS+1}, v{vS+2}')
        A(f'v_max3_f32 v{t0}, v{t0}, v{vS+3}, v{vS+4}')
        A(f'v_max3_f32 v{t0}, v{t0}, v{vS+5}, v{vS+6}')
        A(f'v_max_f32 v{t0}, v{t0}, v{vS+7}')
        self.xlane(t0, t1, 'v_max_f32')
        A(f'v_mul_f32 v{t0}, s{sC1}, v{t0}')
        A(f'v_max_f32 v{t0}, v{vM}, v{t0}')
        A(f'v_sub_f32 v{t1}, v{vM}, v{t0}')
        A(f'v_exp_f32 v{al}, v{t1}')
        A(f'v_mov_b32 v{vM}, v{t0}')
        for e in range(8):
            A(f'v_fma_f32 v{vS+e}, v{vS+e}, s{sC1}, -v{t0}')
        for e in range(8):
            A(f'v_exp_f32 v{vS+e}, v{vS+e}')
        A(f'v_mov_b32_dpp v{vAL}, v{al} quad_perm:[0,0,2,2] row_mask:0xf bank_mask:0xf')
        A(f'v_mov_b32_dpp v{vAL+1}, v{al} quad_perm:[1,1,3,3] row_mask:0xf bank_mask:0xf')
        for u in range(4):
            A(f'v_cvt_pk_bf16_f32 v{vPB+u}, v{vS+2*u}, v{vS+2*u+1}')
        A(f'v_add_f32 v{t1}, v{vS}, v{vS+1}')
        A(f'v_add_f32 v{t2}, v{vS+2}, v{vS+3}')
        A(f'v_add_f32 v{t0}, v{vS+4}, v{vS+5}')
        A(f'v_add_f32 v{t1}, v{t1}, v{t2}')
        A(f'v_add_f32 v{t2}, v{vS+6}, v{vS+7}')
        A(f'v_add_f32 v{t0}, v{t0}, v{t2}')
        A(f'v_add_f32 v{t1}, v{t1}, v{t0}')
        A(f'v_fma_f32 v{vL}, v{vL}, v{al}, v{t1}')
        for u in range(4):
            A(f'v_and_b32 v{vPA+u}, v{vMA}, v{vPB+u}')
            A(f'v_and_b32 v{vPB+u}, v{vMB}, v{vPB+u}')
        for j in range(16):
            A(f'v_pk_mul_f32 {vr(vO + 2*j, 2)}, {vr(vO + 2*j, 2)}, {vr(vAL, 2)}')
        A(f's_waitcnt vmcnt({wv})')
        vf = self.vf and refill
        if vf:
            A(f's_add_u32 s{sT1}, s{sVO}, 8192')
        for half in range(2):
            P = vPB if half else vPA

            def perms(j):
                b = vB + 4 * (j % 3)
                t = j >> 1
                sel = sSHI if j & 1 else sSLO
                for u in range(4):
                    lo = vV[buf] + half*32 + 4*(2*u) + t
                    hi = vV[buf] + half*32 + 4*(2*u + 1) + t
                    A(f'v_perm_b32 v{b+u}, v{hi}, v{lo}, s{sel}')

            perms(0)
            for j in range(8):
                if j < 7:
                    perms(j + 1)
                else:
                    A('s_nop 1')
                A(f'v_mfma_f32_16x16x32_bf16 {vr(vO + 4*j)}, {vr(P)}, {vr(vB + 4*(j % 3))}, {vr(vO + 4*j)}')
            if vf:
                for i in range(8):
                    self.v_load(buf, half, i)
        if vf:
            A(f's_add_u32 s{sVO}, s{sVO}, 16384')
        elif refill:
            self.v_issue(buf)

    def stream_init(self):
        A = self.A
        A(f'v_mov_b32 v{vM}, 0xff7fffff')
        A(f'v_mov_b32 v{vL}, 0')
        A(f'v_and_b32 v{vT}, 2, v{vC}')
        A(f'v_cmp_eq_u32 vcc, 0, v{vT}')
        self.masks()
        A(f'v_cndmask_b32 v{vMA}, 0, -1, vcc')
        A(f'v_not_b32 v{vMB}, v{vMA}')
        for j in range(32):
            A(f'v_mov_b32 v{vO+j}, 0')

    def q_frags(self):
        A = self.A
        A(f'v_and_b32 v{vT}, 1, v{vC}')
        A(f'v_lshlrev_b32 v{vT}, 9, v{vT}')
        A(f'v_lshl_add_u32 v{vT}, v{vG_}, 4, v{vT}')
        for s in range(8):
            A(f'ds_read_b128 {ar(aQ + 4*s)}, v{vT} offset:{L_Q + 64*s}')
        A('s_waitcnt lgkmcnt(0)')

    def startup_loads(self, second_step):
        A = self.A
        sd = self.sd
        self.k_issue(0)
        if sd < 32:
            A(f's_waitcnt vmcnt({sd - 16})')
        self.v_issue(0)
        if sd < 48:
            A(f's_waitcnt vmcnt({sd - 16})')
        self.stamp(4)
        self.k_issue(1, second_step)
        if sd < 64:
            A(f's_waitcnt vmcnt({sd - 16})')
        self.v_issue(1, second_step)

    def wo_frags(self):
        A = self.A
        R = vV[0]
        A(f's_and_b32 s{sU+6}, s2, 31')
        A(f's_mul_i32 s{sU+6}, s{sU+6}, {128*896}')
        A(f's_lshr_b32 s{sU+1}, s2, 5')
        A(f's_lshl_b32 s{sU+1}, s{sU+1}, 7')
        A(f's_add_u32 s{sU+6}, s{sU+6}, s{sU+1}')
        A(f'v_mul_u32_u24 v{vT+8}, 7168, v{vG_}')
        A(f'v_lshl_add_u32 v{vT+8}, v{vC}, 3, v{vT+8}')
        for ks in range(4):
            for i in range(8):
                if (i & 3) == 0:
                    A(f's_add_u32 s{sU+1}, s{sU+6}, {ks*32*896 + (i >> 2)*3584}')
                A(f'buffer_load_dwordx2 {vr(R + ks*16 + 2*i, 2)}, v{vT+8}, {srd(sWO)}, s{sU+1} offen offset:{(i & 3)*896} nt')
        for ks in range(4):
            A(f's_waitcnt vmcnt({24 - 8*ks})')
            for t in range(2):
                for u in range(4):
                    lo = R + ks*16 + 2*(2*u) + t
                    hi = R + ks*16 + 2*(2*u+1) + t
                    A(f'v_perm_b32 v{vS + (2*t)*4 + u}, v{hi}, v{lo}, s{sSLO}')
                    A(f'v_perm_b32 v{vS + (2*t+1)*4 + u}, v{hi}, v{lo}, s{sSHI}')
            for q in range(16):
                A(f'v_accvgpr_write_b32 a{ks*16 + q}, v{vS + q}')

    def gather(self, b0, n):
        A = self.A
        D = vV[0]
        sD, sM, sDone = sU + 2, sU + 3, sU + 4
        A(f's_and_b32 s{sU}, s2, 28')
        A(f's_add_u32 s{sU}, s{sU}, {b0*32}')
        A(f's_and_b32 s{sU+1}, s2, 3')
        A(f's_lshl_b32 s{sD}, s{sU}, 12')
        A(f's_and_b32 s{sU+6}, s{sU+1}, 1')
        A(f's_lshl_b32 s{sU+6}, s{sU+6}, 9')
        A(f's_add_u32 s{sD}, s{sD}, s{sU+6}')
        A(f's_lshr_b32 s{sU+6}, s{sU+1}, 1')
        A(f's_lshl_b32 s{sU+6}, s{sU+6}, 8')
        A(f's_add_u32 s{sD}, s{sD}, s{sU+6}')
        A(f's_add_u32 s{sD}, s{sD}, {WS_P}')
        A(f's_lshl_b32 s{sM}, s{sU}, 6')
        A(f's_lshr_b32 s{sU+1}, s{sU+1}, 1')
        A(f's_lshl_b32 s{sU+1}, s{sU+1}, 4')
        A(f's_add_u32 s{sM}, s{sM}, s{sU+1}')
        A(f's_add_u32 s{sM}, s{sM}, {WS_ML}')
        A(f'v_lshlrev_b32 v{vT+7}, 10, v{vG_}')
        A(f'v_lshl_add_u32 v{vT+7}, v{vC}, 4, v{vT+7}')
        A(f'v_and_b32 v{vT+8}, 3, v{vLANE}')
        A(f'v_lshlrev_b32 v{vT+8}, 6, v{vT+8}')
        A(f'v_lshlrev_b32 v{vT+6}, 4, v{vC}')
        A(f'v_lshl_add_u32 v{vT+6}, v{vG_}, 2, v{vT+6}')
        A(f's_mov_b32 s{sDone}, 0')
        if self.pollstart:
            self.wait_flag(4)
        top = self.lab('G')
        self.L(top)
        for k in range(n):
            sk = self.lab('GS')
            A(f's_bitcmp1_b32 s{sDone}, {k}')
            A(f's_cbranch_scc1 {sk}')
            for sp in range(4):
                A(f's_add_u32 s{sU+1}, s{sD}, {k*32*4096 + sp*4096}')
                A(f'buffer_load_dwordx4 {vr(D + 20*k + 4*sp)}, v{vT+7}, {srd(sWS)}, s{sU+1} offen sc1')
            A(f's_add_u32 s{sU+1}, s{sM}, {k*2048}')
            A(f'buffer_load_dwordx4 {vr(D + 20*k + 16)}, v{vT+8}, {srd(sWS)}, s{sU+1} offen sc1')
            self.L(sk)
        A('s_waitcnt vmcnt(0)')
        for k in range(n):
            sk = self.lab('GC')
            d = D + 20*k
            A(f's_bitcmp1_b32 s{sDone}, {k}')
            A(f's_cbranch_scc1 {sk}')
            for q in range(10):
                A(f'v_xor_b32 v{d + 2*q + 1}, s{sTAG}, v{d + 2*q + 1}')
            A(f'v_or3_b32 v{vT+2}, v{d+1}, v{d+3}, v{d+5}')
            A(f'v_or3_b32 v{vT+3}, v{d+7}, v{d+9}, v{d+11}')
            A(f'v_or3_b32 v{vT+4}, v{d+13}, v{d+15}, v{d+17}')
            A(f'v_or3_b32 v{vT+2}, v{vT+2}, v{vT+3}, v{d+19}')
            A(f'v_or_b32 v{vT+2}, v{vT+2}, v{vT+4}')
            A(f'v_cmp_ne_u32 vcc, 0, v{vT+2}')
            M, Lr = d + 16, d + 18
            A(f'v_max_f32_dpp v{vT+2}, v{M}, v{M} quad_perm:[1,0,3,2] row_mask:0xf bank_mask:0xf')
            A(f's_cbranch_vccnz {sk}')
            A('s_nop 0')
            A(f'v_max_f32_dpp v{vT+2}, v{vT+2}, v{vT+2} quad_perm:[2,3,0,1] row_mask:0xf bank_mask:0xf')
            A(f'v_sub_f32 v{vT+2}, v{M}, v{vT+2}')
            A(f'v_exp_f32 v{vT+2}, v{vT+2}')
            A('s_nop 0')
            A(f'v_mul_f32 v{vT+3}, v{vT+2}, v{Lr}')
            A('s_nop 1')
            A(f'v_add_f32_dpp v{vT+3}, v{vT+3}, v{vT+3} quad_perm:[1,0,3,2] row_mask:0xf bank_mask:0xf')
            A('s_nop 1')
            A(f'v_add_f32_dpp v{vT+3}, v{vT+3}, v{vT+3} quad_perm:[2,3,0,1] row_mask:0xf bank_mask:0xf')
            A(f'v_rcp_f32 v{vT+3}, v{vT+3}')
            A('s_nop 0')
            A(f'v_mul_f32 v{vT+2}, v{vT+2}, v{vT+3}')
            A('s_nop 1')
            A(f'v_mul_f32_dpp v{vT+3}, v{vT+2}, v{d} quad_perm:[0,0,0,0] row_mask:0xf bank_mask:0xf')
            A(f'v_mul_f32_dpp v{vT+4}, v{vT+2}, v{d+2} quad_perm:[0,0,0,0] row_mask:0xf bank_mask:0xf')
            for sp in range(1, 4):
                qp = f'quad_perm:[{sp},{sp},{sp},{sp}] row_mask:0xf bank_mask:0xf'
                A(f'v_fmac_f32_dpp v{vT+3}, v{vT+2}, v{d+4*sp} {qp}')
                A(f'v_fmac_f32_dpp v{vT+4}, v{vT+2}, v{d+4*sp+2} {qp}')
            A(f'v_cvt_pk_bf16_f32 v{vT+3}, v{vT+3}, v{vT+4}')
            A(f'ds_write_b32 v{vT+6}, v{vT+3} offset:{L_o + (b0 + k)*272}')
            A(f's_bitset1_b32 s{sDone}, {k}')
            self.L(sk)
        A(f's_sub_u32 s{sTO}, s{sTO}, 1')
        A(f's_cmp_eq_u32 s{sTO}, 0')
        A('s_cbranch_scc1 M_end')
        if self.psleep:
            done = self.lab('GD')
            A(f's_cmp_eq_u32 s{sDone}, {(1 << n) - 1}')
            A(f's_cbranch_scc1 {done}')
            A(f's_sleep {self.psleep}')
            A(f's_branch {top}')
            self.L(done)
        else:
            A(f's_cmp_lg_u32 s{sDone}, {(1 << n) - 1}')
            A(f's_cbranch_scc1 {top}')

    def gemv_prep(self):
        A = self.A
        self.masks()
        A(f'v_and_b32 v{vAL}, 7, v{vC}')
        A(f'v_mul_u32_u24 v{vAL}, 272, v{vAL}')
        A(f'v_lshl_add_u32 v{vAL}, v{vG_}, 4, v{vAL}')
        A(f'v_and_b32 v{vT+1}, 1, v{vG_}')
        A(f'v_lshlrev_b32 v{vT+1}, 2, v{vT+1}')
        A(f'v_and_b32 v{vT+2}, 2, v{vG_}')
        A(f'v_add_u32 v{vT+1}, v{vT+1}, v{vT+2}')
        A(f's_mov_b32 s{sU+1}, {7*32*512}')
        A(f'v_mul_lo_u32 v{vAL+1}, v{vT+1}, s{sU+1}')
        A(f'v_lshl_add_u32 v{vAL+1}, v{vC}, 4, v{vAL+1}')
        A(f's_lshl_b32 s{sU+7}, s2, 9')
        A(f's_add_u32 s{sU+7}, s{sU+7}, {WS_Y}')
        A(f's_add_u32 s{sU+8}, s{sU+7}, {7*32*512}')
        for q in range(8):
            A(f'v_mov_b32 v{vV[1] + 2*q + 1}, s{sTAG}')

    def gemv(self):
        A = self.A
        AF = vO
        Y = vO + 16
        P = vV[1]
        for ks in range(4):
            A(f'ds_read_b128 {vr(AF + 4*ks)}, v{vAL} offset:{L_o + 64*ks}')
        for ks in range(4):
            A(f's_waitcnt lgkmcnt({3-ks})')
            for jj in range(4):
                y = Y + 4*jj
                c = '0' if ks == 0 else vr(y)
                A(f'v_mfma_f32_16x16x32_bf16 {vr(y)}, {vr(AF + 4*ks)}, {ar(ks*16 + jj*4)}, {c}')
        A('s_nop 4')
        for jj in range(4):
            for rr in range(2):
                A(f'v_cndmask_b32 v{P + rr*8 + 2*jj}, v{Y + 4*jj + rr}, v{Y + 4*jj + 2 + rr}, s[{sMG2}:{sMG2+1}]')
            if jj & 1:
                for rr in range(2):
                    A(f'buffer_store_dwordx4 {vr(P + rr*8 + 2*(jj-1))}, v{vAL+1}, {srd(sWS)}, s{sU+7+rr} offen offset:{256*(jj >> 1)} sc1')

    def main(self):
        A = self.A
        self.o += ['.globl ' + NAME, '.p2align 8', f'.type {NAME},@function', NAME + ':']
        self.stamp(0)
        if self.ts:
            A('s_memtime s[92:93]')
            for i in range(1, 6):
                A(f's_mov_b64 s[{sTS+2*i}:{sTS+2*i+1}], 0')
        self.prologue()
        A('s_cmp_eq_u32 s3, 2')
        A('s_cbranch_scc1 M_w2')
        A('s_barrier')
        A('s_cmp_eq_u32 s3, 1')
        A('s_cbranch_scc1 M_w1')
        A('s_cmp_eq_u32 s3, 3')
        A('s_cbranch_scc1 M_w3')

        self.startup_loads(16384 * 3)
        self.stream_init()
        A(f's_waitcnt vmcnt({max(self.sd - 16, 0)})')
        self.set_flag(2)
        self.stamp(3)
        if not self.noq:
            self.wait_flag(0, True)
        self.stamp(1)
        self.q_frags()
        A(f's_mov_b32 s{sCNT}, 30')
        self.L('M_loop')
        self.tile(0, True, 48, 48)
        self.tile(1, True, 48, 48)
        A(f's_sub_u32 s{sCNT}, s{sCNT}, 1')
        A(f's_cmp_lg_u32 s{sCNT}, 0')
        A('s_cbranch_scc1 M_loop')
        if not self.notail:
            A('s_barrier')
        self.wait_flag(3, True)
        H = vS
        A(f'v_lshlrev_b32 v{vT+4}, 4, v{vLANE}')
        A(f'ds_read_b128 {vr(vB)}, v{vT+4} offset:{L_H + 8*1024}')
        A('s_waitcnt lgkmcnt(0)')
        A(f'v_max_f32 v{vT}, v{vM}, v{vB}')
        A(f'v_sub_f32 v{vT+1}, v{vM}, v{vT}')
        A(f'v_sub_f32 v{vT+2}, v{vB}, v{vT}')
        A(f'v_exp_f32 v{vT+1}, v{vT+1}')
        A(f'v_exp_f32 v{vT+2}, v{vT+2}')
        A(f'v_mov_b32 v{vM}, v{vT}')
        A('s_nop 0')
        A(f'v_mul_f32 v{vL}, v{vL}, v{vT+1}')
        A(f'v_fmac_f32 v{vL}, v{vB+1}, v{vT+2}')
        A(f'v_mov_b32_dpp v{vAL}, v{vT+1} quad_perm:[0,0,2,2] row_mask:0xf bank_mask:0xf')
        A(f'v_mov_b32_dpp v{vAL+1}, v{vT+1} quad_perm:[1,1,3,3] row_mask:0xf bank_mask:0xf')
        A(f'v_mov_b32_dpp v{vT+5}, v{vT+2} quad_perm:[0,0,2,2] row_mask:0xf bank_mask:0xf')
        A(f'v_mov_b32_dpp v{vT+6}, v{vT+2} quad_perm:[1,1,3,3] row_mask:0xf bank_mask:0xf')
        for half in range(2):
            for j in range(4):
                A(f'ds_read_b128 {vr(vS + 4*j)}, v{vT+4} offset:{L_H + (half*4 + j)*1024}')
            for j in range(8):
                A(f'v_pk_mul_f32 {vr(vO + half*16 + 2*j, 2)}, {vr(vO + half*16 + 2*j, 2)}, {vr(vAL, 2)}')
            A('s_waitcnt lgkmcnt(0)')
            for j in range(8):
                A(f'v_pk_fma_f32 {vr(vO + half*16 + 2*j, 2)}, {vr(vS + 2*j, 2)}, {vr(vT+5, 2)}, {vr(vO + half*16 + 2*j, 2)}')
        self.tile(0, False, 48, 32)
        A(f'v_lshlrev_b32 v{vT+8}, 4, v{vLANE}')
        A(f's_lshl_b32 s{sU}, s2, 12')
        A(f's_add_u32 s{sU}, s{sU}, {WS_P}')
        A(f's_lshl_b32 s{sU+2}, s2, 6')
        A(f's_add_u32 s{sU+2}, s{sU+2}, {WS_ML}')
        PUB = vV[0]
        for q in range(10):
            A(f'v_mov_b32 v{PUB + 2*q + 1}, s{sTAG}')
        self.tile(1, False, 16, 0)
        self.stamp(2)
        if self.notail:
            A('s_branch M_fin')
        self.xlane(vL, vT, 'v_add_f32')
        for j in range(8):
            A(f'v_cndmask_b32 v{vT+1}, v{vO+4*j}, v{vO+4*j+1}, s[{sMG1}:{sMG1+1}]')
            A(f'v_cndmask_b32 v{vT+2}, v{vO+4*j+2}, v{vO+4*j+3}, s[{sMG1}:{sMG1+1}]')
            A(f'v_cndmask_b32 v{PUB+2*j}, v{vT+1}, v{vT+2}, s[{sMG2}:{sMG2+1}]')
            if j & 1:
                A(f'buffer_store_dwordx4 {vr(PUB + 2*(j-1))}, v{vT+8}, {srd(sWS)}, s{sU} offen offset:{1024*(j >> 1)} sc1')
        A(f'v_mov_b32 v{PUB+16}, v{vM}')
        A(f'v_mov_b32 v{PUB+18}, v{vL}')
        A('s_mov_b64 exec, 3')
        A(f'buffer_store_dwordx4 {vr(PUB+16)}, v{vT+8}, {srd(sWS)}, s{sU+2} offen sc1')
        A('s_mov_b64 exec, -1')
        self.set_flag(4)
        self.stamp(3)
        if self.nogather or self.p2wait == 2:
            A('s_branch M_fin')
        A(f's_and_b32 s{sU+1}, s2, 31')
        A(f's_cmp_ge_u32 s{sU+1}, 7')
        A('s_cbranch_scc1 M_fin')
        A(f's_lshr_b32 s{sU}, s2, 5')
        A(f's_mul_i32 s{sU+2}, s{sU}, 7')
        A(f's_add_u32 s{sU+2}, s{sU+2}, s{sU+1}')
        A(f's_lshl_b32 s{sU+7}, s{sU+2}, 7')
        A(f's_lshl_b32 s{sU+2}, s{sU+2}, 14')
        A(f's_add_u32 s{sU+2}, s{sU+2}, {WS_Y}')
        A(f's_add_u32 s{sU+3}, s{sU+2}, 4096')
        A(f's_add_u32 s{sU+5}, s{sU+2}, 8192')
        A(f's_add_u32 s{sU+6}, s{sU+2}, 12288')
        A(f'v_lshlrev_b32 v{vT}, 3, v{vLANE}')
        A(f'v_bfe_u32 v{vT+1}, v{vLANE}, 1, 4')
        A(f'v_lshlrev_b32 v{vT+1}, 3, v{vT+1}')
        A(f'v_lshrrev_b32 v{vT+2}, 5, v{vLANE}')
        A(f'v_lshl_add_u32 v{vT+1}, v{vT+2}, 2, v{vT+1}')
        A(f'v_and_b32 v{vT+2}, 1, v{vLANE}')
        A(f'v_lshl_add_u32 v{vT+1}, v{vT+2}, 1, v{vT+1}')
        E = vV[1]
        A(f's_load_dword s{sG}, s[18:19], {WS_G}')
        self.L('M_p2')
        for src in range(32):
            so = (sU+2, sU+3, sU+5, sU+6)[src >> 3]
            A(f'buffer_load_dwordx2 {vr(E + 2*src, 2)}, v{vT}, {srd(sWS)}, s{so} offen offset:{(src & 7)*512} sc1')
        A('s_waitcnt vmcnt(0)')
        for q in range(32):
            A(f'v_xor_b32 v{E + 2*q + 1}, s{sTAG}, v{E + 2*q + 1}')
        A(f'v_or3_b32 v{vT+2}, v{E+1}, v{E+3}, v{E+5}')
        for q in range(3, 31, 2):
            A(f'v_or3_b32 v{vT+2}, v{vT+2}, v{E + 2*q + 1}, v{E + 2*q + 3}')
        A(f'v_or_b32 v{vT+2}, v{vT+2}, v{E+63}')
        A(f'v_cmp_ne_u32 vcc, 0, v{vT+2}')
        self.poll_tail('M_p2')
        for st in (1, 2, 4, 8, 16):
            for q in range(0, 32, 2*st):
                A(f'v_add_f32 v{E + 2*q}, v{E + 2*q}, v{E + 2*(q+st)}')
        A(f'v_cvt_pk_bf16_f32 v{vT+2}, v{E}, v{E}')
        A(f'buffer_store_short v{vT+2}, v{vT+1}, {srd(sOUT)}, s{sU+7} offen')
        A('s_cmp_lg_u32 s2, 0')
        A('s_cbranch_scc1 M_fin')
        A(f'v_mov_b32 v{vT+7}, 0')
        A('s_waitcnt lgkmcnt(0)')
        A(f's_add_u32 s{sG}, s{sG}, 1')
        A(f'v_mov_b32 v{vT+8}, s{sG}')
        A('s_mov_b64 exec, 1')
        A(f'buffer_store_dword v{vT+8}, v{vT+7}, {srd(sWS)}, 0 offen offset:{WS_G} sc1')
        A('s_mov_b64 exec, -1')
        A('s_branch M_fin')

        self.L('M_w1')
        self.stream_init()
        self.wait_flag(2)
        self.startup_loads(16384)
        if not self.noq:
            self.wait_flag(0, True)
        self.stamp(1)
        self.q_frags()
        self.tile(0, False, 48, 32)
        self.tile(1, False, 16, 0)
        A(f'v_lshlrev_b32 v{vT+4}, 4, v{vLANE}')
        A(f'v_mov_b32 v{vB}, v{vM}')
        A(f'v_mov_b32 v{vB+1}, v{vL}')
        A('s_nop 5')
        for j in range(8):
            A(f'ds_write_b128 v{vT+4}, {vr(vO + 4*j)} offset:{L_H + j*1024}')
        A(f'ds_write_b128 v{vT+4}, {vr(vB)} offset:{L_H + 8*1024}')
        self.set_flag(3)
        self.stamp(2)
        if self.notail:
            A('s_branch M_fin')
        if self.noq:
            self.wait_flag(0, True)
        A('s_cmp_ge_u32 s2, 224')
        A('s_cbranch_scc1 M_fin')
        A('s_barrier')
        if self.nogather:
            A('s_branch M_fin')
        self.gather(0, 3)
        self.set_flag(5)
        A('s_branch M_fin')

        self.L('M_w3')
        if self.notail:
            A('s_branch M_fin')
        A('s_cmp_ge_u32 s2, 224')
        A('s_cbranch_scc1 M_fin')
        if not self.wolate:
            self.wo_frags()
        self.wait_flag(0, True)
        A('s_barrier')
        if self.wolate and not self.nowo:
            self.wo_frags()
        if self.nogather:
            A('s_branch M_fin')
        self.gemv_prep()
        self.stamp(3)
        self.gather(6, 2)
        self.wait_flag(5)
        self.wait_flag(6)
        self.stamp(4)
        self.gemv()
        A('s_branch M_fin')

        self.L('M_w2')
        if self.noprod:
            A('s_barrier')
            A('s_branch M_fin')
        A('s_setprio 3')
        if self.nobar0:
            A('s_barrier')
        self.q_issue()
        if not self.nobar0:
            A('s_barrier')
        self.q_compute()
        self.stamp(2)
        if self.nopoll:
            A('s_branch M_fin')
        self.q_gather()
        self.stamp(1)
        A('s_setprio 0')
        if self.notail:
            A('s_branch M_fin')
        A('s_cmp_ge_u32 s2, 224')
        A('s_cbranch_scc1 M_fin')
        A('s_barrier')
        if self.nogather:
            A('s_branch M_fin')
        self.gather(3, 3)
        self.set_flag(6)

        self.L('M_fin')
        if self.ts:
            self.stamp(5)
            A('s_memtime s[94:95]')
            A('s_waitcnt lgkmcnt(0)')
            A(f's_lshl_b32 s{sU}, s2, 3')
            A(f's_add_u32 s{sU}, s{sU}, s3')
            A(f's_lshl_b32 s{sU}, s{sU}, 6')
            A(f's_add_u32 s{sU}, s{sU}, {WS_T}')
            A(f'v_mov_b32 v{vT}, 0')
            A('s_mov_b64 exec, 1')
            for i in range(8):
                A(f'v_mov_b32 v{vB}, s{sTS + 2*i}')
                A(f'v_mov_b32 v{vB+1}, s{sTS + 2*i + 1}')
                A(f'buffer_store_dwordx2 {vr(vB, 2)}, v{vT}, {srd(sWS)}, s{sU} offen offset:{8*i}')
                A('s_nop 1')
        self.L('M_end')
        A('s_endpgm')

    def build(self):
        self.o = ['; GQA decode attention block (q-proj + flash-decoding + out-proj) in one launch; generated by bench/gen5.py',
                  f'; @launch grid=(256,1,1) block=(256,1,1) lds={LDS_SIZE}',
                  '.amdgcn_target "amdgcn-amd-amdhsa--gfx950"', '.text']
        self.main()
        self.o += ['.section .rodata,"a"', '.p2align 6',
                   f'.amdhsa_kernel {NAME}',
                   f'  .amdhsa_next_free_vgpr {NV + NA}',
                   '  .amdhsa_next_free_sgpr 96',
                   f'  .amdhsa_accum_offset {NV}',
                   '  .amdhsa_group_segment_fixed_size 0',
                   '  .amdhsa_kernarg_size 64',
                   '  .amdhsa_user_sgpr_count 2',
                   '  .amdhsa_user_sgpr_kernarg_segment_ptr 1',
                   '  .amdhsa_system_sgpr_workgroup_id_x 1',
                   '  .amdhsa_float_denorm_mode_32 3',
                   '.end_amdhsa_kernel']
        return '\n'.join(self.o) + '\n'


if __name__ == '__main__':
    kw = {}
    for a in sys.argv[2:]:
        k, v = a.split('=')
        kw[k] = int(v) if v.isdigit() else v
    open(sys.argv[1], 'w').write(Gen(**kw).build())
```

```python
import re
import sys

NAME = 'standalone__gqa_block_cached__sampling_kernel'

WS_G = 0
WS_Q = 0x1000
WS_C = 0x30000
WS_P = 0x40000
WS_ML = 0x140000
WS_Y = 0x180000
WS_T = 0x280000
WS_SIZE = 0x300000

L_WQ = 0x6a00
L_H = 0x3800
L_o = 0x5c00
L_FL = 0x6500
L_Q = 0x6600
LDS_SIZE = 0x14a00

sK, sV, sWS, sX, sWQ, sWO, sOUT = 20, 24, 28, 32, 36, 40, 44
sTAG, sG, sC1, sSLO, sSHI, sKO, sVO, sT0, sT1, sCNT, sTO = 52, 53, 54, 55, 56, 57, 58, 59, 60, 61, 62
sMG1, sMG2, sCB = 64, 66, 68
sOWN, sISS, sTK, sGB = 48, 49, 50, 51
sU = 70
sTS = 80

vLANE, vKOFF, vVOFF, vM, vL, vMA, vMB = 0, 1, 2, 3, 4, 5, 6
vT = 7
vS = 16
vPA, vPB = 24, 28
vB = 32
vAL = 44
vC, vG_ = 46, 47
vV = (48, 112)
vO = 176
vPUB = 208
NV = 228
aK = (0, 64)
aQ = 128
NA = 160


def srd(n):
    return f's[{n}:{n+3}]'


def vr(n, k=4):
    return f'v[{n}:{n+k-1}]'


def ar(n, k=4):
    return f'a[{n}:{n+k-1}]'


class Gen:
    def __init__(self, **kw):
        self.o = []
        self.uid = 0
        d = dict(ts=0, timeout=1 << 18, kf=1, vf=0, sd=32, notail=0, noq=0, nowo=0, wolate=1, nocomp=0, noprod=0,
                 bar0=1, nopoll=0, pollstart=1, psleep=0, nogather=0, p2wait=0, qdelay=1, kpol='nt', vpol='nt', S=61, nset=1, stag=6, spec=4, g44=0, womid=0)
        for k in kw:
            assert k in d, k
        d.update(kw)
        self.__dict__.update(d)

    def A(self, s):
        if s.startswith('buffer_'):
            m = re.search(r'offset:(\d+)', s)
            assert not m or int(m.group(1)) < 4096, s
        self.o.append('    ' + s)

    def L(self, s):
        self.o.append(s + ':')

    def lab(self, p):
        self.uid += 1
        return f'{p}_{self.uid}'

    def stamp(self, i):
        if self.ts:
            n = sTS + 2 * i
            self.A(f's_memrealtime s[{n}:{n+1}]')

    def prologue(self):
        A = self.A
        A('s_cmp_ge_u32 s2, 256')
        A('s_cbranch_scc1 M_end')
        A('s_load_dwordx16 s[4:19], s[0:1], 0')
        A(f'v_lshrrev_b32 v{vT}, 6, v0')
        A(f'v_and_b32 v{vLANE}, 63, v0')
        A(f'v_readfirstlane_b32 s3, v{vT}')
        A(f'v_mov_b32 v{vT+1}, {L_FL}')
        A(f'v_mov_b32 v{vS}, 0')
        A(f'v_mov_b32 v{vS+1}, 0')
        A(f'v_mov_b32 v{vS+2}, 0')
        A(f'v_mov_b32 v{vS+3}, 0')
        A(f'ds_write_b128 v{vT+1}, {vr(vS)}')
        A(f'ds_write_b128 v{vT+1}, {vr(vS)} offset:16')
        A(f'v_and_b32 v{vC}, 15, v{vLANE}')
        A(f'v_lshrrev_b32 v{vG_}, 4, v{vLANE}')
        A(f'v_lshlrev_b32 v{vKOFF}, 9, v{vC}')
        A(f'v_lshl_add_u32 v{vKOFF}, v{vG_}, 4, v{vKOFF}')
        A(f'v_lshlrev_b32 v{vVOFF}, 11, v{vG_}')
        A(f'v_lshl_add_u32 v{vVOFF}, v{vC}, 4, v{vVOFF}')
        A(f's_lshl_b32 s{sKO}, s2, 20')
        A(f's_lshl_b32 s{sT0}, s3, 15')
        A(f's_add_u32 s{sKO}, s{sKO}, s{sT0}')
        A(f's_mov_b32 s{sVO}, s{sKO}')
        for n, size in ((sK, 0x10000000), (sV, 0x10000000), (sWS, WS_SIZE), (sX, 8 * 448 * 2), (sWQ, 448 * 4096 * 2),
                        (sWO, 4096 * 448 * 2), (sOUT, 8 * 448 * 2)):
            A(f's_mov_b32 s{n+2}, {size:#x}')
            A(f's_mov_b32 s{n+3}, 0x00020000')
        A(f's_mov_b32 s{sTO}, {self.timeout}')
        A(f's_mov_b32 s{sC1}, 0x3db8aa3b')
        A(f's_mov_b32 s{sSLO}, 0x05040100')
        A(f's_mov_b32 s{sSHI}, 0x07060302')
        A('s_waitcnt lgkmcnt(0)')
        for n, p in ((sX, 4), (sWQ, 10), (sK, 6), (sV, 8), (sWS, 18), (sWO, 12), (sOUT, 14)):
            A(f's_mov_b64 s[{n}:{n+1}], s[{p}:{p+1}]')

    def masks(self):
        A = self.A
        A(f'v_and_b32 v{vT+1}, 1, v{vG_}')
        A(f'v_and_b32 v{vT+2}, 2, v{vG_}')
        A(f'v_cmp_ne_u32 s[{sMG1}:{sMG1+1}], 0, v{vT+1}')
        A(f'v_cmp_ne_u32 s[{sMG2}:{sMG2+1}], 0, v{vT+2}')

    def wait_flag(self, word, also_tag=False):
        A = self.A
        lw, ok = self.lab('W'), self.lab('K')
        A(f'v_mov_b32 v{vT+1}, {L_FL}')
        A(f's_mov_b32 s{sU+5}, {self.timeout * 8}')
        self.L(lw)
        A(f'ds_read_b128 {vr(vB)}, v{vT+1} offset:{(word >> 2) * 16}')
        A(f's_sub_u32 s{sU+5}, s{sU+5}, 1')
        A(f's_cmp_eq_u32 s{sU+5}, 0')
        A('s_cbranch_scc1 M_end')
        A('s_waitcnt lgkmcnt(0)')
        A(f'v_readfirstlane_b32 s{sU+9}, v{vB+(word & 3)}')
        if also_tag:
            A(f'v_readfirstlane_b32 s{sTAG}, v{vB+1}')
        else:
            A('s_nop 0')
        A(f's_cmp_lg_u32 s{sU+9}, 0')
        A(f's_cbranch_scc1 {ok}')
        A('s_sleep 1')
        A(f's_branch {lw}')
        self.L(ok)

    def set_flag(self, word):
        A = self.A
        A(f'v_mov_b32 v{vT+1}, {L_FL + 4*word}')
        A(f'v_mov_b32 v{vT+2}, 1')
        A(f'ds_write_b32 v{vT+1}, v{vT+2}')

    QX, QB = 48, 112

    def q_issue(self):
        A = self.A
        A(f's_lshr_b32 s{sU}, s2, 2')
        A(f's_and_b32 s{sU+1}, s{sU}, 7')
        A(f's_lshl_b32 s{sU+1}, s{sU+1}, 3')
        A(f's_lshr_b32 s{sU+2}, s{sU}, 3')
        A(f's_add_u32 s{sU+1}, s{sU+1}, s{sU+2}')
        A(f's_lshl_b32 s{sU+1}, s{sU+1}, 8')
        A(f's_add_u32 s{sU+1}, s{sU+1}, {WS_C}')
        A(f'v_mov_b32 v{vT+2}, 0')
        A('s_mov_b64 exec, 1')
        A(f'buffer_store_dword v{vT+2}, v{vT+2}, {srd(sWS)}, s{sU+1} offen sc1')
        A('s_mov_b64 exec, -1')
        A(f's_lshl_b32 s{sU+1}, s{sU}, 7')
        A(f'v_lshrrev_b32 v{vT}, 3, v{vLANE}')
        A(f'v_lshlrev_b32 v{vT}, 13, v{vT}')
        A(f'v_and_b32 v{vT+1}, 7, v{vLANE}')
        A(f'v_lshl_add_u32 v{vT}, v{vT+1}, 4, v{vT}')
        A(f'v_and_b32 v{vT+1}, 7, v{vC}')
        A(f'v_mul_u32_u24 v{vT+1}, 896, v{vT+1}')
        A(f'v_lshl_add_u32 v{vT+1}, v{vG_}, 4, v{vT+1}')
        for kt in range(14):
            A(f'buffer_load_dwordx4 {vr(self.QX + 4*kt)}, v{vT+1}, {srd(sX)}, 0 offen offset:{64*kt}')
        for n in range(56):
            A(f's_mov_b32 m0, {L_WQ + n*1024}')
            A(f's_add_u32 s{sU+3}, s{sU+1}, {n*65536}')
            A(f'buffer_load_dwordx4 v{vT}, {srd(sWQ)}, s{sU+3} offen nt lds')

    def q_tag(self):
        A = self.A
        A(f's_lshr_b32 s{sU+4}, s2, 2')
        A(f's_lshl_b32 s{sU+4}, s{sU+4}, 11')
        A(f's_add_u32 s{sU+4}, s{sU+4}, {WS_Q}')
        A(f'v_lshlrev_b32 v{vT}, 4, v{vLANE}')
        A(f'v_lshlrev_b32 v{vT+7}, 7, v{vG_}')
        A(f'v_bfe_u32 v{vT+4}, v{vC}, 2, 1')
        A(f'v_lshl_add_u32 v{vT+7}, v{vT+4}, 6, v{vT+7}')
        A(f'v_lshrrev_b32 v{vT+4}, 3, v{vC}')
        A(f'v_lshl_add_u32 v{vT+7}, v{vT+4}, 5, v{vT+7}')
        A(f'v_and_b32 v{vT+4}, 3, v{vC}')
        A(f'v_lshl_add_u32 v{vT+7}, v{vT+4}, 3, v{vT+7}')
        A(f'v_add_u32 v{vT+7}, {L_Q}, v{vT+7}')
        A('s_waitcnt lgkmcnt(0)')
        A(f's_add_u32 s{sG}, s{sG}, 1')
        A(f's_mul_i32 s{sTAG}, s{sG}, 0x9e3779b1')
        A(f's_xor_b32 s{sTAG}, s{sTAG}, 0x5bd1e995')
        A(f'v_mov_b32 v{vT+6}, s{sTAG}')

    def q_compute(self):
        A = self.A
        QX, QB = self.QX, self.QB
        DQ = vO
        A(f'v_lshrrev_b32 v{vT+2}, 2, v{vC}')
        A(f'v_lshl_add_u32 v{vT+2}, v{vG_}, 3, v{vT+2}')
        A(f'v_lshlrev_b32 v{vT+2}, 7, v{vT+2}')
        A(f'v_and_b32 v{vT+3}, 3, v{vC}')
        A(f'v_lshl_add_u32 v{vT+2}, v{vT+3}, 3, v{vT+2}')
        A(f'v_add_u32 v{vT+2}, {L_WQ}, v{vT+2}')
        A(f'v_and_b32 v{vT+3}, 7, v{vC}')
        A(f'v_lshlrev_b32 v{vT+3}, 14, v{vT+3}')
        A(f'v_lshrrev_b32 v{vT+4}, 3, v{vC}')
        A(f'v_cmp_ne_u32 s[{sMG1}:{sMG1+1}], 0, v{vT+4}')
        A(f'v_lshl_add_u32 v{vT+3}, v{vT+4}, 6, v{vT+3}')
        A(f'v_lshl_add_u32 v{vT+3}, v{vG_}, 4, v{vT+3}')
        A(f's_lshl_b32 s{sU+1}, s{sU}, 8')
        A(f's_add_u32 s{sU+1}, s{sU+1}, {WS_Q}')
        for q in range(4):
            A(f'v_mov_b32 v{vS + 2*q + 1}, s{sTAG}')

        def reads(kt):
            A(f's_waitcnt vmcnt({52 - 4*kt})')
            for ct in range(4):
                r = QB + (kt & 1)*16 + ct*4
                A(f'ds_read_b64_tr_b16 {vr(r, 2)}, v{vT+2} offset:{kt*4096 + ct*32}')
                A(f'ds_read_b64_tr_b16 {vr(r + 2, 2)}, v{vT+2} offset:{kt*4096 + ct*32 + 512}')
        reads(0)
        for kt in range(14):
            if kt < 13:
                reads(kt + 1)
                A('s_waitcnt lgkmcnt(8)')
            else:
                self.stamp(3)
                A('s_waitcnt lgkmcnt(0)')
            for ct in range(4):
                c = '0' if kt == 0 else vr(DQ + 4*ct)
                A(f'v_mfma_f32_16x16x32_bf16 {vr(DQ + 4*ct)}, {vr(QB + (kt & 1)*16 + 4*ct)}, {vr(QX + 4*kt)}, {c}')
        A('s_nop 7')
        for st in range(2):
            for r in range(4):
                A(f'v_cndmask_b32 v{vB + r}, v{DQ + 4*st + r}, v{DQ + 8 + 4*st + r}, s[{sMG1}:{sMG1+1}]')
            A(f'v_cvt_pk_bf16_f32 v{vS + 4*st}, v{vB}, v{vB+1}')
            A(f'v_cvt_pk_bf16_f32 v{vS + 4*st + 2}, v{vB+2}, v{vB+3}')
            A(f'buffer_store_dwordx4 {vr(vS + 4*st)}, v{vT+3}, {srd(sWS)}, s{sU+1} offen offset:{128*st} sc1')

    def q_gather(self):
        A = self.A
        F = vV[0]
        if self.qdelay:
            self.wait_flag(2)
        A(f'v_mov_b32 v{vT+8}, {L_FL}')
        A(f'v_mov_b32 v{vT+5}, 1')
        self.L('M_qpoll')
        for n in range(2):
            A(f'buffer_load_dwordx4 {vr(F + 4*n)}, v{vT}, {srd(sWS)}, s{sU+4} offen offset:{1024*n} sc1')
        A('s_waitcnt vmcnt(0)')
        for q in range(4):
            A(f'v_xor_b32 v{F + 2*q + 1}, s{sTAG}, v{F + 2*q + 1}')
        A(f'v_or3_b32 v{vT+2}, v{F+1}, v{F+3}, v{F+5}')
        A(f'v_or_b32 v{vT+2}, v{vT+2}, v{F+7}')
        A(f'v_cmp_ne_u32 vcc, 0, v{vT+2}')
        self.poll_tail('M_qpoll')
        A(f'ds_write2_b32 v{vT+7}, v{F}, v{F+2} offset0:0 offset1:1')
        A(f'ds_write2_b32 v{vT+7}, v{F+4}, v{F+6} offset0:128 offset1:129')
        A(f'ds_write_b64 v{vT+8}, {vr(vT+5, 2)}')

    def poll_tail(self, lab):
        A = self.A
        A(f's_sub_u32 s{sTO}, s{sTO}, 1')
        A(f's_cmp_eq_u32 s{sTO}, 0')
        A('s_cbranch_scc1 M_end')
        A(f's_cbranch_vccnz {lab}')

    def k_load(self, buf, j):
        so = f's{sT0}' if j >> 3 else f's{sKO}'
        self.A(f'buffer_load_dwordx4 {ar(aK[buf] + 4*j)}, v{vKOFF}, {srd(sK)}, {so} offen offset:{(j & 7)*64} {self.kpol}')

    def v_load(self, buf, half, i):
        so = f's{sT1}' if i >> 2 else f's{sVO}'
        self.A(f'buffer_load_dwordx4 {vr(vV[buf] + half*32 + 4*i)}, v{vVOFF}, {srd(sV)}, {so} offen '
               f'offset:{(i & 3)*512 + half*256} {self.vpol}')

    def k_issue(self, buf, step=16384):
        self.A(f's_add_u32 s{sT0}, s{sKO}, 8192')
        for j in range(16):
            self.k_load(buf, j)
        self.A(f's_add_u32 s{sKO}, s{sKO}, {step}')

    def v_issue(self, buf, step=16384):
        self.A(f's_add_u32 s{sT1}, s{sVO}, 8192')
        if self.vf:
            for half in range(2):
                for i in range(8):
                    self.v_load(buf, half, i)
        else:
            for i in range(8):
                for half in range(2):
                    self.v_load(buf, half, i)
        self.A(f's_add_u32 s{sVO}, s{sVO}, {step}')

    def xlane(self, t0, t1, op):
        A = self.A
        for ins in ('v_permlane16_swap_b32', 'v_permlane32_swap_b32'):
            A(f'v_mov_b32 v{t1}, v{t0}')
            A('s_nop 1')
            A(f'{ins} v{t0}, v{t1}')
            A('s_nop 0')
            A(f'{op} v{t0}, v{t0}, v{t1}')

    def tile(self, buf, refill, wk, wv):
        A0 = self.A
        def A(x):
            if self.nocomp and (x.startswith('v_') or x.startswith('s_nop')):
                return
            A0(x)
        A(f's_waitcnt vmcnt({wk})')
        kf = self.kf and refill
        if kf:
            A(f's_add_u32 s{sT0}, s{sKO}, 8192')
        for j in range(16):
            T, s = j >> 3, j & 7
            c = '0' if s == 0 else vr(vS + 4*T)
            A(f'v_mfma_f32_16x16x32_bf16 {vr(vS + 4*T)}, {ar(aK[buf] + 4*j)}, {ar(aQ + 4*s)}, {c}')
            if kf:
                self.k_load(buf, j)
        if kf:
            A(f's_add_u32 s{sKO}, s{sKO}, 16384')
            A('s_nop 5')
        elif refill:
            self.k_issue(buf)
        else:
            A('s_nop 6')
        t0, t1, t2, al = vT, vT + 1, vT + 2, vT + 3
        A(f'v_max3_f32 v{t0}, v{vS}, v{vS+1}, v{vS+2}')
        A(f'v_max3_f32 v{t0}, v{t0}, v{vS+3}, v{vS+4}')
        A(f'v_max3_f32 v{t0}, v{t0}, v{vS+5}, v{vS+6}')
        A(f'v_max_f32 v{t0}, v{t0}, v{vS+7}')
        self.xlane(t0, t1, 'v_max_f32')
        A(f'v_mul_f32 v{t0}, s{sC1}, v{t0}')
        A(f'v_max_f32 v{t0}, v{vM}, v{t0}')
        A(f'v_sub_f32 v{t1}, v{vM}, v{t0}')
        A(f'v_exp_f32 v{al}, v{t1}')
        A(f'v_mov_b32 v{vM}, v{t0}')
        for e in range(8):
            A(f'v_fma_f32 v{vS+e}, v{vS+e}, s{sC1}, -v{t0}')
        for e in range(8):
            A(f'v_exp_f32 v{vS+e}, v{vS+e}')
        A(f'v_mov_b32_dpp v{vAL}, v{al} quad_perm:[0,0,2,2] row_mask:0xf bank_mask:0xf')
        A(f'v_mov_b32_dpp v{vAL+1}, v{al} quad_perm:[1,1,3,3] row_mask:0xf bank_mask:0xf')
        for u in range(4):
            A(f'v_cvt_pk_bf16_f32 v{vPB+u}, v{vS+2*u}, v{vS+2*u+1}')
        A(f'v_add_f32 v{t1}, v{vS}, v{vS+1}')
        A(f'v_add_f32 v{t2}, v{vS+2}, v{vS+3}')
        A(f'v_add_f32 v{t0}, v{vS+4}, v{vS+5}')
        A(f'v_add_f32 v{t1}, v{t1}, v{t2}')
        A(f'v_add_f32 v{t2}, v{vS+6}, v{vS+7}')
        A(f'v_add_f32 v{t0}, v{t0}, v{t2}')
        A(f'v_add_f32 v{t1}, v{t1}, v{t0}')
        A(f'v_fma_f32 v{vL}, v{vL}, v{al}, v{t1}')
        for u in range(4):
            A(f'v_and_b32 v{vPA+u}, v{vMA}, v{vPB+u}')
            A(f'v_and_b32 v{vPB+u}, v{vMB}, v{vPB+u}')
        for j in range(16):
            A(f'v_pk_mul_f32 {vr(vO + 2*j, 2)}, {vr(vO + 2*j, 2)}, {vr(vAL, 2)}')
        A(f's_waitcnt vmcnt({wv})')
        vf = self.vf and refill
        if vf:
            A(f's_add_u32 s{sT1}, s{sVO}, 8192')
        for half in range(2):
            P = vPB if half else vPA

            def perms(j):
                b = vB + 4 * (j % 3)
                t = j >> 1
                sel = sSHI if j & 1 else sSLO
                for u in range(4):
                    lo = vV[buf] + half*32 + 4*(2*u) + t
                    hi = vV[buf] + half*32 + 4*(2*u + 1) + t
                    A(f'v_perm_b32 v{b+u}, v{hi}, v{lo}, s{sel}')

            perms(0)
            for j in range(8):
                if j < 7:
                    perms(j + 1)
                else:
                    A('s_nop 1')
                A(f'v_mfma_f32_16x16x32_bf16 {vr(vO + 4*j)}, {vr(P)}, {vr(vB + 4*(j % 3))}, {vr(vO + 4*j)}')
            if vf:
                for i in range(8):
                    self.v_load(buf, half, i)
        if vf:
            A(f's_add_u32 s{sVO}, s{sVO}, 16384')
        elif refill:
            self.v_issue(buf)

    def stream_init(self):
        A = self.A
        A(f'v_mov_b32 v{vM}, 0xff7fffff')
        A(f'v_mov_b32 v{vL}, 0')
        A(f'v_and_b32 v{vT}, 2, v{vC}')
        A(f'v_cmp_eq_u32 vcc, 0, v{vT}')
        self.masks()
        A(f'v_cndmask_b32 v{vMA}, 0, -1, vcc')
        A(f'v_not_b32 v{vMB}, v{vMA}')
        for j in range(32):
            A(f'v_mov_b32 v{vO+j}, 0')

    def q_frags(self):
        A = self.A
        A(f'v_and_b32 v{vT}, 1, v{vC}')
        A(f'v_lshlrev_b32 v{vT}, 9, v{vT}')
        A(f'v_lshl_add_u32 v{vT}, v{vG_}, 4, v{vT}')
        for s in range(8):
            A(f'ds_read_b128 {ar(aQ + 4*s)}, v{vT} offset:{L_Q + 64*s}')
        A('s_waitcnt lgkmcnt(0)')

    def startup_loads(self, second_step, bar=False):
        A = self.A
        sd = self.sd
        self.k_issue(0)
        if sd < 32:
            A(f's_waitcnt vmcnt({sd - 16})')
        self.v_issue(0)
        if bar:
            A('s_barrier')
        if sd < 48:
            A(f's_waitcnt vmcnt({sd - 16})')
        self.stamp(4)
        self.k_issue(1, second_step)
        if sd < 64:
            A(f's_waitcnt vmcnt({sd - 16})')
        self.v_issue(1, second_step)

    def wo_frags(self):
        A = self.A
        R = vV[0]
        A(f's_and_b32 s{sU+6}, s2, 31')
        A(f's_mul_i32 s{sU+6}, s{sU+6}, {128*896}')
        A(f's_lshr_b32 s{sU+1}, s2, 5')
        A(f's_lshl_b32 s{sU+1}, s{sU+1}, 7')
        A(f's_add_u32 s{sU+6}, s{sU+6}, s{sU+1}')
        A(f'v_mul_u32_u24 v{vT+8}, 7168, v{vG_}')
        A(f'v_lshl_add_u32 v{vT+8}, v{vC}, 3, v{vT+8}')
        for ks in range(4):
            for i in range(8):
                if (i & 3) == 0:
                    A(f's_add_u32 s{sU+1}, s{sU+6}, {ks*32*896 + (i >> 2)*3584}')
                A(f'buffer_load_dwordx2 {vr(R + ks*16 + 2*i, 2)}, v{vT+8}, {srd(sWO)}, s{sU+1} offen offset:{(i & 3)*896} nt')
        for ks in range(4):
            A(f's_waitcnt vmcnt({24 - 8*ks})')
            for t in range(2):
                for u in range(4):
                    lo = R + ks*16 + 2*(2*u) + t
                    hi = R + ks*16 + 2*(2*u+1) + t
                    A(f'v_perm_b32 v{vS + (2*t)*4 + u}, v{hi}, v{lo}, s{sSLO}')
                    A(f'v_perm_b32 v{vS + (2*t+1)*4 + u}, v{hi}, v{lo}, s{sSHI}')
            for q in range(16):
                A(f'v_accvgpr_write_b32 a{ks*16 + q}, v{vS + q}')

    def gather(self, b0, n):
        A = self.A
        D = vV[0]
        ML = vO
        ns = 4 * n
        ALL = (1 << ns) - 1
        sD, sM, sDone, sGot, sRdy, sNeed = sU + 2, sU + 3, sU + 4, sKO, sVO, sT0
        sW = 96
        sW2 = 4
        A(f's_and_b32 s{sU}, s2, 28')
        A(f's_add_u32 s{sU}, s{sU}, {b0*32}')
        A(f's_and_b32 s{sU+1}, s2, 3')
        A(f's_lshl_b32 s{sD}, s{sU}, 12')
        A(f's_and_b32 s{sU+6}, s{sU+1}, 1')
        A(f's_lshl_b32 s{sU+6}, s{sU+6}, 9')
        A(f's_add_u32 s{sD}, s{sD}, s{sU+6}')
        A(f's_lshr_b32 s{sU+6}, s{sU+1}, 1')
        A(f's_lshl_b32 s{sU+6}, s{sU+6}, 8')
        A(f's_add_u32 s{sD}, s{sD}, s{sU+6}')
        A(f's_add_u32 s{sD}, s{sD}, {WS_P}')
        A(f's_lshl_b32 s{sM}, s2, 9')
        A(f's_add_u32 s{sM}, s{sM}, {WS_ML + b0*64}')
        A(f'v_lshlrev_b32 v{vT+7}, 10, v{vG_}')
        A(f'v_lshl_add_u32 v{vT+7}, v{vC}, 4, v{vT+7}')
        A(f'v_min_u32 v{vT+8}, {ns-1}, v{vC}')
        A(f'v_lshlrev_b32 v{vT+8}, 4, v{vT+8}')
        A(f'v_lshlrev_b32 v{vT+6}, 4, v{vC}')
        A(f'v_lshl_add_u32 v{vT+6}, v{vG_}, 2, v{vT+6}')
        A(f's_not_b32 s{sU+1}, s{sTAG}')
        for src in range(ns):
            A(f'v_mov_b32 v{D + 4*src + 1}, s{sU+1}')
        A(f's_mov_b32 s{sDone}, 0')
        A(f's_mov_b32 s{sGot}, 0')
        A(f's_mov_b32 s{sRdy}, 0')
        if self.pollstart:
            self.wait_flag(4)
        top = self.lab('G')
        if self.ts and b0 < 6:
            self.stamp(3)
            A(f's_mov_b32 s{sCNT}, 0')
        self.L(top)
        if self.ts and b0 < 6:
            A(f's_add_u32 s{sCNT}, s{sCNT}, 1')
            A(f's_mov_b32 s{sTS+8}, s{sCNT}')
            A(f's_mov_b32 s{sTS+9}, 0')
        A(f'buffer_load_dwordx4 {vr(ML)}, v{vT+8}, {srd(sWS)}, s{sM} offen sc1')
        A(f's_andn2_b32 s{sU+1}, {ALL}, s{sRdy}')
        A(f's_bcnt1_i32_b32 s{sU+1}, s{sU+1}')
        A(f's_cmp_le_u32 s{sU+1}, {self.spec}')
        A(f's_cselect_b32 s{sNeed}, {ALL}, s{sRdy}')
        A(f's_andn2_b32 s{sNeed}, s{sNeed}, s{sGot}')
        for k in range(n):
            sk = self.lab('GS')
            A(f's_bfe_u32 s{sU+1}, s{sNeed}, {(4 << 16) | (4*k)}')
            A(f's_cbranch_scc0 {sk}')
            for sp in range(4):
                src = 4*k + sp
                A(f's_bitcmp1_b32 s{sNeed}, {src}')
                A('s_cselect_b64 exec, -1, 0')
                A(f's_add_u32 s{sU+1}, s{sD}, {k*32*4096 + sp*4096}')
                A(f'buffer_load_dwordx4 {vr(D + 4*src)}, v{vT+7}, {srd(sWS)}, s{sU+1} offen sc1')
            A('s_mov_b64 exec, -1')
            self.L(sk)
        A('s_waitcnt vmcnt(0)')
        A(f'v_xor_b32 v{vT+2}, s{sTAG}, v{ML+1}')
        A(f'v_xor_b32 v{vT+3}, s{sTAG}, v{ML+3}')
        A(f'v_or_b32 v{vT+2}, v{vT+2}, v{vT+3}')
        A(f'v_cmp_eq_u32 vcc, 0, v{vT+2}')
        A(f'v_max_f32_dpp v{vT+2}, v{ML}, v{ML} quad_perm:[1,0,3,2] row_mask:0xf bank_mask:0xf')
        A(f's_and_b32 s{sRdy}, vcc_lo, {ALL}')
        A('s_nop 0')
        A(f'v_max_f32_dpp v{vT+2}, v{vT+2}, v{vT+2} quad_perm:[2,3,0,1] row_mask:0xf bank_mask:0xf')
        A(f'v_sub_f32 v{vT+2}, v{ML}, v{vT+2}')
        A(f'v_exp_f32 v{vT+2}, v{vT+2}')
        A('s_nop 0')
        A(f'v_mul_f32 v{vT+3}, v{vT+2}, v{ML+2}')
        A('s_nop 1')
        A(f'v_add_f32_dpp v{vT+3}, v{vT+3}, v{vT+3} quad_perm:[1,0,3,2] row_mask:0xf bank_mask:0xf')
        A('s_nop 1')
        A(f'v_add_f32_dpp v{vT+3}, v{vT+3}, v{vT+3} quad_perm:[2,3,0,1] row_mask:0xf bank_mask:0xf')
        A(f'v_rcp_f32 v{vT+3}, v{vT+3}')
        A('s_nop 0')
        A(f'v_mul_f32 v{vT+5}, v{vT+2}, v{vT+3}')
        for k in range(n):
            sk = self.lab('GB')
            d = D + 16*k
            A(f's_bitcmp1_b32 s{sDone}, {k}')
            A(f's_cbranch_scc1 {sk}')
            for sp in range(4):
                A(f'v_xor_b32 v{vB+2*sp}, s{sTAG}, v{d+4*sp+1}')
                A(f'v_xor_b32 v{vB+2*sp+1}, s{sTAG}, v{d+4*sp+3}')
            for sp in range(4):
                A(f'v_or_b32 v{vB+2*sp}, v{vB+2*sp}, v{vB+2*sp+1}')
            for sp in range(4):
                A(f'v_cmp_ne_u32 s[{sW2+2*sp}:{sW2+2*sp+1}], 0, v{vB+2*sp}')
            for sp in range(4):
                A(f'v_readlane_b32 s{sW+sp}, v{vT+5}, {4*k + sp}')
            for sp in range(4):
                A(f's_cmp_eq_u64 s[{sW2+2*sp}:{sW2+2*sp+1}], 0')
                A(f's_cselect_b32 s{sU+1}, {1 << (4*k + sp)}, 0')
                A(f's_or_b32 s{sGot}, s{sGot}, s{sU+1}')
            A(f'v_mul_f32 v{vT+3}, s{sW}, v{d}')
            A(f'v_mul_f32 v{vT+4}, s{sW}, v{d+2}')
            A(f's_and_b32 s{sU+1}, s{sGot}, s{sRdy}')
            A(f's_bfe_u32 s{sU+1}, s{sU+1}, {(4 << 16) | (4*k)}')
            A(f's_cmp_lg_u32 s{sU+1}, 15')
            A(f's_cbranch_scc1 {sk}')
            for sp in range(1, 4):
                A(f'v_fmac_f32 v{vT+3}, s{sW+sp}, v{d+4*sp}')
                A(f'v_fmac_f32 v{vT+4}, s{sW+sp}, v{d+4*sp+2}')
            A(f'v_cvt_pk_bf16_f32 v{vT+3}, v{vT+3}, v{vT+4}')
            A(f'ds_write_b32 v{vT+6}, v{vT+3} offset:{L_o + (b0 + k)*272}')
            A(f's_bitset1_b32 s{sDone}, {k}')
            self.L(sk)
        A(f's_sub_u32 s{sTO}, s{sTO}, 1')
        A(f's_cmp_eq_u32 s{sTO}, 0')
        A('s_cbranch_scc1 M_end')
        A(f's_cmp_lg_u32 s{sDone}, {(1 << n) - 1}')
        A(f's_cbranch_scc1 {top}')

    def gemv_prep(self):
        A = self.A
        self.masks()
        A(f'v_and_b32 v{vAL}, 7, v{vC}')
        A(f'v_mul_u32_u24 v{vAL}, 272, v{vAL}')
        A(f'v_lshl_add_u32 v{vAL}, v{vG_}, 4, v{vAL}')
        A(f'v_and_b32 v{vT+1}, 1, v{vG_}')
        A(f'v_lshlrev_b32 v{vT+1}, 2, v{vT+1}')
        A(f'v_and_b32 v{vT+2}, 2, v{vG_}')
        A(f'v_add_u32 v{vT+1}, v{vT+1}, v{vT+2}')
        A(f's_mov_b32 s{sU+1}, {7*32*512}')
        A(f'v_mul_lo_u32 v{vAL+1}, v{vT+1}, s{sU+1}')
        A(f'v_lshl_add_u32 v{vAL+1}, v{vC}, 4, v{vAL+1}')
        A(f's_lshl_b32 s{sU+7}, s2, 9')
        A(f's_add_u32 s{sU+7}, s{sU+7}, {WS_Y}')
        A(f's_add_u32 s{sU+8}, s{sU+7}, {7*32*512}')
        for q in range(8):
            A(f'v_mov_b32 v{vV[1] + 2*q + 1}, s{sTAG}')

    def gemv(self):
        A = self.A
        AF = vO
        Y = vO + 16
        P = vV[1]
        for ks in range(4):
            A(f'ds_read_b128 {vr(AF + 4*ks)}, v{vAL} offset:{L_o + 64*ks}')
        for ks in range(4):
            A(f's_waitcnt lgkmcnt({3-ks})')
            for jj in range(4):
                y = Y + 4*jj
                c = '0' if ks == 0 else vr(y)
                A(f'v_mfma_f32_16x16x32_bf16 {vr(y)}, {vr(AF + 4*ks)}, {ar(ks*16 + jj*4)}, {c}')
        A('s_nop 4')
        for jj in range(4):
            for rr in range(2):
                A(f'v_cndmask_b32 v{P + rr*8 + 2*jj}, v{Y + 4*jj + rr}, v{Y + 4*jj + 2 + rr}, s[{sMG2}:{sMG2+1}]')
            if jj & 1:
                for rr in range(2):
                    A(f'buffer_store_dwordx4 {vr(P + rr*8 + 2*(jj-1))}, v{vAL+1}, {srd(sWS)}, s{sU+7+rr} offen offset:{256*(jj >> 1)} sc1')

    def reduce_prep(self):
        A = self.A
        R = vPUB
        A(f's_lshr_b32 s{sOWN}, s2, 2')
        A(f's_lshl_b32 s{sGB}, s{sOWN}, 7')
        A(f's_lshl_b32 s{sOWN}, s{sOWN}, 14')
        A(f's_and_b32 s{sU+1}, s2, 3')
        A(f's_lshl_b32 s{sISS}, s{sU+1}, 7')
        A(f's_add_u32 s{sOWN}, s{sOWN}, s{sISS}')
        A(f's_add_u32 s{sOWN}, s{sOWN}, {WS_Y}')
        A(f's_add_u32 s{sISS}, s{sOWN}, 4096')
        A(f's_add_u32 s{sTK}, s{sOWN}, 8192')
        A(f's_add_u32 s{sCNT}, s{sOWN}, 12288')
        A(f'v_lshlrev_b32 v{R}, 9, v{vG_}')
        A(f'v_lshl_add_u32 v{R}, v{vC}, 3, v{R}')
        A(f's_and_b32 s{sU+6}, s{sU+1}, 1')
        A(f's_lshl_b32 s{sU+6}, s{sU+6}, 6')
        A(f's_add_u32 s{sGB}, s{sGB}, s{sU+6}')
        A(f's_lshr_b32 s{sU+6}, s{sU+1}, 1')
        A(f's_lshl_b32 s{sU+6}, s{sU+6}, 2')
        A(f's_add_u32 s{sGB}, s{sGB}, s{sU+6}')
        A(f'v_lshrrev_b32 v{R+1}, 1, v{vC}')
        A(f'v_lshlrev_b32 v{R+1}, 3, v{R+1}')
        A(f'v_and_b32 v{R+2}, 1, v{vC}')
        A(f'v_lshl_add_u32 v{R+1}, v{R+2}, 1, v{R+1}')
        A(f's_load_dword s{sG}, s[18:19], {WS_G}')
        A('s_waitcnt lgkmcnt(0)')

    def reduce(self):
        A = self.A
        R = vPUB
        E = vV[0]
        ns = self.nset

        def issue(i):
            for n in range(8):
                so = (sOWN, sISS, sTK, sCNT)[n >> 1]
                A(f'buffer_load_dwordx2 {vr(E + 16*i + 2*n, 2)}, v{R}, {srd(sWS)}, s{so} offen offset:{(n & 1)*2048} sc1')
        for i in range(ns):
            issue(i)
            if i < ns - 1:
                A(f's_sleep {self.stag}')
        self.L('M_p2')
        for i in range(ns):
            e = E + 16*i
            A(f's_waitcnt vmcnt({8*(ns-1)})')
            for q in range(8):
                A(f'v_xor_b32 v{e + 2*q + 1}, s{sTAG}, v{e + 2*q + 1}')
            A(f'v_or3_b32 v{vT+2}, v{e+1}, v{e+3}, v{e+5}')
            A(f'v_or3_b32 v{vT+3}, v{e+7}, v{e+9}, v{e+11}')
            A(f'v_or3_b32 v{vT+2}, v{vT+2}, v{e+13}, v{e+15}')
            A(f'v_or_b32 v{vT+2}, v{vT+2}, v{vT+3}')
            A(f'v_cmp_ne_u32 vcc, 0, v{vT+2}')
            for st in (1, 2, 4):
                for q in range(0, 8, 2*st):
                    dst = vT + 4 if st == 4 else e + 2*q
                    A(f'v_add_f32 v{dst}, v{e + 2*q}, v{e + 2*(q+st)}')
            A('s_cbranch_vccz M_p2ok')
            issue(i)
        A(f's_sub_u32 s{sTO}, s{sTO}, 1')
        A(f's_cmp_lg_u32 s{sTO}, 0')
        A('s_cbranch_scc1 M_p2')
        A('s_branch M_end')
        self.L('M_p2ok')
        self.xlane(vT + 4, vT + 5, 'v_add_f32')
        A(f'v_cvt_pk_bf16_f32 v{vT+2}, v{vT+4}, v{vT+4}')
        A('s_mov_b64 exec, 0xffff')
        A(f'buffer_store_short v{vT+2}, v{R+1}, {srd(sOUT)}, s{sGB} offen')
        A('s_mov_b64 exec, 1')
        A('s_cmp_lg_u32 s2, 0')
        A('s_cbranch_scc1 M_nogen')
        A(f'v_mov_b32 v{vT+7}, 0')
        A(f's_add_u32 s{sG}, s{sG}, 1')
        A(f'v_mov_b32 v{vT+8}, s{sG}')
        A(f'buffer_store_dword v{vT+8}, v{vT+7}, {srd(sWS)}, 0 offen offset:{WS_G} sc1')
        self.L('M_nogen')
        A('s_mov_b64 exec, -1')

    def main(self):
        A = self.A
        self.o += ['.globl ' + NAME, '.p2align 8', f'.type {NAME},@function', NAME + ':']
        self.stamp(0)
        if self.ts:
            A('s_memtime s[92:93]')
            for i in range(1, 6):
                A(f's_mov_b64 s[{sTS+2*i}:{sTS+2*i+1}], 0')
        self.prologue()
        A('s_cmp_eq_u32 s3, 2')
        A('s_cbranch_scc1 M_w2')
        if self.bar0 == 2:
            A('s_cmp_eq_u32 s3, 0')
            A('s_cbranch_scc1 M_w0')
        A('s_barrier')
        A('s_cmp_eq_u32 s3, 1')
        A('s_cbranch_scc1 M_w1')
        A('s_cmp_eq_u32 s3, 3')
        A('s_cbranch_scc1 M_w3')

        self.L('M_w0')
        self.startup_loads(16384 * 3, self.bar0 == 2)
        self.stream_init()
        A(f's_waitcnt vmcnt({max(self.sd - 16, 0)})')
        self.set_flag(2)
        self.stamp(3)
        if not self.noq:
            self.wait_flag(0, True)
        self.stamp(1)
        self.q_frags()
        S = self.S
        P = (64 - S) * 4
        PUB = vPUB
        for q in range(10):
            A(f'v_mov_b32 v{PUB + 2*q + 1}, s{sTAG}')
        A(f'v_lshlrev_b32 v{vT+8}, 4, v{vLANE}')
        A(f's_mov_b32 s{sOWN}, s{sKO}')
        A(f's_mov_b32 s{sISS}, 4')
        A(f's_lshr_b32 s{sU}, s2, 2')
        A(f's_lshl_b32 s{sGB}, s{sU}, 22')
        A(f's_add_u32 s{sGB}, s{sGB}, {S * 16384}')
        A(f's_lshl_b32 s{sU}, s{sU}, 8')
        A(f's_add_u32 s{sU}, s{sU}, {WS_C}')
        A(f's_add_u32 s{sCB}, s18, s{sU}')
        A(f's_addc_u32 s{sCB+1}, s19, 0')
        A(f's_mov_b32 s{sTK}, {P}')

        def ticket():
            if P:
                A(f's_mov_b32 s{sTK}, 1')
                A(f's_atomic_add s{sTK}, s[{sCB}:{sCB+1}], 0 glc')

        def next_tile(buf):
            st, jn = self.lab('NS'), self.lab('NJ')
            A(f's_cmp_lt_u32 s{sISS}, {S}')
            A(f's_cbranch_scc1 {st}')
            A('s_waitcnt lgkmcnt(0)')
            A(f's_cmp_ge_u32 s{sTK}, {P}')
            A(f's_cbranch_scc1 M_drain{buf}')
            A(f's_and_b32 s{sU}, s{sTK}, 3')
            A(f's_lshl_b32 s{sU}, s{sU}, 20')
            A(f's_lshr_b32 s{sU+1}, s{sTK}, 2')
            A(f's_lshl_b32 s{sU+1}, s{sU+1}, 14')
            A(f's_add_u32 s{sKO}, s{sGB}, s{sU}')
            A(f's_add_u32 s{sKO}, s{sKO}, s{sU+1}')
            ticket()
            A(f's_branch {jn}')
            self.L(st)
            A(f's_mov_b32 s{sKO}, s{sOWN}')
            A(f's_add_u32 s{sOWN}, s{sOWN}, 16384')
            A(f's_add_u32 s{sISS}, s{sISS}, 1')
            if buf == 0:
                A(f's_cmp_eq_u32 s{sISS}, 41')
                A('s_cbranch_scc1 M_merge')
                self.L('M_merged')
            A(f's_cmp_lg_u32 s{sISS}, {S}')
            A(f's_cbranch_scc1 {jn}')
            ticket()
            self.L(jn)
            A(f's_mov_b32 s{sVO}, s{sKO}')

        self.L('M_loop')
        next_tile(0)
        self.tile(0, True, 48, 48)
        next_tile(1)
        self.tile(1, True, 48, 48)
        A('s_branch M_loop')

        self.L('M_merge')
        self.wait_flag(3)
        A(f'v_lshlrev_b32 v{vT+4}, 4, v{vLANE}')
        A(f'ds_read_b128 {vr(vB)}, v{vT+4} offset:{L_H + 8*1024}')
        A('s_waitcnt lgkmcnt(0)')
        A(f'v_max_f32 v{vT}, v{vM}, v{vB}')
        A(f'v_sub_f32 v{vT+1}, v{vM}, v{vT}')
        A(f'v_sub_f32 v{vT+2}, v{vB}, v{vT}')
        A(f'v_exp_f32 v{vT+1}, v{vT+1}')
        A(f'v_exp_f32 v{vT+2}, v{vT+2}')
        A(f'v_mov_b32 v{vM}, v{vT}')
        A('s_nop 0')
        A(f'v_mul_f32 v{vL}, v{vL}, v{vT+1}')
        A(f'v_fmac_f32 v{vL}, v{vB+1}, v{vT+2}')
        A(f'v_mov_b32_dpp v{vAL}, v{vT+1} quad_perm:[0,0,2,2] row_mask:0xf bank_mask:0xf')
        A(f'v_mov_b32_dpp v{vAL+1}, v{vT+1} quad_perm:[1,1,3,3] row_mask:0xf bank_mask:0xf')
        A(f'v_mov_b32_dpp v{vT+5}, v{vT+2} quad_perm:[0,0,2,2] row_mask:0xf bank_mask:0xf')
        A(f'v_mov_b32_dpp v{vT+6}, v{vT+2} quad_perm:[1,1,3,3] row_mask:0xf bank_mask:0xf')
        for half in range(2):
            for j in range(4):
                A(f'ds_read_b128 {vr(vS + 4*j)}, v{vT+4} offset:{L_H + (half*4 + j)*1024}')
            for j in range(8):
                A(f'v_pk_mul_f32 {vr(vO + half*16 + 2*j, 2)}, {vr(vO + half*16 + 2*j, 2)}, {vr(vAL, 2)}')
            A('s_waitcnt lgkmcnt(0)')
            for j in range(8):
                A(f'v_pk_fma_f32 {vr(vO + half*16 + 2*j, 2)}, {vr(vS + 2*j, 2)}, {vr(vT+5, 2)}, {vr(vO + half*16 + 2*j, 2)}')
        A('s_branch M_merged')

        for first in (1, 0):
            self.L(f'M_drain{first}')
            if not self.notail:
                A('s_barrier')
            A(f's_lshl_b32 s{sU}, s2, 12')
            A(f's_add_u32 s{sU}, s{sU}, {WS_P}')
            A(f's_and_b32 s{sU+2}, s2, 28')
            A(f's_lshl_b32 s{sU+2}, s{sU+2}, 9')
            A(f's_lshr_b32 s{sU+3}, s2, 5')
            A(f's_lshl_b32 s{sU+3}, s{sU+3}, 6')
            A(f's_add_u32 s{sU+2}, s{sU+2}, s{sU+3}')
            A(f's_and_b32 s{sU+3}, s2, 3')
            A(f's_lshl_b32 s{sU+3}, s{sU+3}, 4')
            A(f's_add_u32 s{sU+2}, s{sU+2}, s{sU+3}')
            A(f's_add_u32 s{sU+2}, s{sU+2}, {WS_ML}')
            A(f'v_lshrrev_b32 v{vT+7}, 2, v{vLANE}')
            A(f'v_lshlrev_b32 v{vT+7}, 14, v{vT+7}')
            A(f'v_and_b32 v{vT+6}, 3, v{vLANE}')
            A(f'v_lshl_add_u32 v{vT+7}, v{vT+6}, 9, v{vT+7}')
            self.tile(first, False, 48, 32)
            self.tile(1 - first, False, 16, 0)
            if first == 1:
                A('s_branch M_pub')
        self.L('M_pub')
        self.stamp(2)
        if self.notail:
            A('s_branch M_fin')
        self.xlane(vL, vT, 'v_add_f32')
        for j in range(8):
            A(f'v_cndmask_b32 v{vT+1}, v{vO+4*j}, v{vO+4*j+1}, s[{sMG1}:{sMG1+1}]')
            A(f'v_cndmask_b32 v{vT+2}, v{vO+4*j+2}, v{vO+4*j+3}, s[{sMG1}:{sMG1+1}]')
            A(f'v_cndmask_b32 v{PUB+2*j}, v{vT+1}, v{vT+2}, s[{sMG2}:{sMG2+1}]')
            if j & 1:
                A(f'buffer_store_dwordx4 {vr(PUB + 2*(j-1))}, v{vT+8}, {srd(sWS)}, s{sU} offen offset:{1024*(j >> 1)} sc1')
        A(f'v_mov_b32_dpp v{PUB+16}, v{vM} quad_perm:[0,0,1,1] row_mask:0xf bank_mask:0xf')
        A(f'v_mov_b32_dpp v{PUB+18}, v{vL} quad_perm:[0,0,1,1] row_mask:0xf bank_mask:0xf')
        A('s_mov_b64 exec, 0xfffffff')
        A(f'buffer_store_dwordx4 {vr(PUB+16)}, v{vT+7}, {srd(sWS)}, s{sU+2} offen sc1')
        A('s_mov_b64 exec, -1')
        self.set_flag(4)
        self.stamp(3)
        A('s_branch M_fin')

        self.L('M_w1')
        self.stream_init()
        self.wait_flag(2)
        self.startup_loads(16384)
        if not self.noq:
            self.wait_flag(0, True)
        self.stamp(1)
        self.q_frags()
        self.tile(0, False, 48, 32)
        self.tile(1, False, 16, 0)
        A(f'v_lshlrev_b32 v{vT+4}, 4, v{vLANE}')
        A(f'v_mov_b32 v{vB}, v{vM}')
        A(f'v_mov_b32 v{vB+1}, v{vL}')
        A('s_nop 5')
        for j in range(8):
            A(f'ds_write_b128 v{vT+4}, {vr(vO + 4*j)} offset:{L_H + j*1024}')
        A(f'ds_write_b128 v{vT+4}, {vr(vB)} offset:{L_H + 8*1024}')
        self.set_flag(3)
        self.stamp(2)
        if self.notail:
            A('s_branch M_fin')
        if self.noq:
            self.wait_flag(0, True)
        A('s_cmp_ge_u32 s2, 224')
        A('s_cbranch_scc1 M_fin')
        A('s_barrier')
        if self.nogather:
            A('s_branch M_fin')
        self.gather(0, 4 if self.g44 else 3)
        self.set_flag(5)
        A('s_branch M_fin')

        self.L('M_w3')
        if self.notail:
            A('s_branch M_fin')
        A('s_cmp_ge_u32 s2, 224')
        A('s_cbranch_scc1 M_fin')
        if not self.wolate and not self.womid:
            self.wo_frags()
        self.wait_flag(0, True)
        if not self.wolate and self.womid:
            self.wait_flag(3)
            self.wo_frags()
        if not self.wolate:
            self.gemv_prep()
            self.reduce_prep()
        A('s_barrier')
        if self.wolate and not self.nowo:
            self.wo_frags()
        if self.nogather:
            A('s_branch M_fin')
        if self.wolate:
            self.gemv_prep()
            self.reduce_prep()
        self.stamp(3)
        if not self.g44:
            self.gather(6, 2)
        self.wait_flag(5)
        self.wait_flag(6)
        self.stamp(4)
        self.gemv()
        self.stamp(2)
        self.reduce()
        A('s_branch M_fin')

        self.L('M_w2')
        if self.noprod:
            A('s_barrier')
            A('s_branch M_fin')
        A('s_setprio 3')
        A(f's_load_dword s{sG}, s[18:19], {WS_G}')
        if self.bar0 != 1:
            A('s_barrier')
        A(f's_and_b32 s{sU}, s2, 3')
        A(f's_cmp_lg_u32 s{sU}, 0')
        A('s_cbranch_scc1 M_noprod1')
        self.q_issue()
        self.L('M_noprod1')
        if self.bar0 == 1:
            A('s_barrier')
        self.q_tag()
        A(f's_and_b32 s{sU+1}, s2, 3')
        A(f's_cmp_lg_u32 s{sU+1}, 0')
        A('s_cbranch_scc1 M_noprod2')
        self.q_compute()
        self.L('M_noprod2')
        self.stamp(2)
        if self.nopoll:
            A('s_branch M_fin')
        self.q_gather()
        self.stamp(1)
        A('s_setprio 0')
        if self.notail:
            A('s_branch M_fin')
        A('s_cmp_ge_u32 s2, 224')
        A('s_cbranch_scc1 M_fin')
        A('s_barrier')
        if self.nogather:
            A('s_branch M_fin')
        self.gather(*((4, 4) if self.g44 else (3, 3)))
        self.set_flag(6)

        self.L('M_fin')
        if self.ts:
            self.stamp(5)
            A('s_memtime s[94:95]')
            A('s_waitcnt lgkmcnt(0)')
            A(f's_lshl_b32 s{sU}, s2, 3')
            A(f's_add_u32 s{sU}, s{sU}, s3')
            A(f's_lshl_b32 s{sU}, s{sU}, 6')
            A(f's_add_u32 s{sU}, s{sU}, {WS_T}')
            A(f'v_mov_b32 v{vT}, 0')
            A('s_mov_b64 exec, 1')
            for i in range(8):
                A(f'v_mov_b32 v{vB}, s{sTS + 2*i}')
                A(f'v_mov_b32 v{vB+1}, s{sTS + 2*i + 1}')
                A(f'buffer_store_dwordx2 {vr(vB, 2)}, v{vT}, {srd(sWS)}, s{sU} offen offset:{8*i}')
                A('s_nop 1')
        self.L('M_end')
        A('s_endpgm')

    def build(self):
        self.o = ['; GQA decode attention block (q-proj + flash-decoding + out-proj) in one launch; generated by bench/gen8.py',
                  f'; @launch grid=(256,1,1) block=(256,1,1) lds={LDS_SIZE}',
                  '.amdgcn_target "amdgcn-amd-amdhsa--gfx950"', '.text']
        self.main()
        self.o += ['.section .rodata,"a"', '.p2align 6',
                   f'.amdhsa_kernel {NAME}',
                   f'  .amdhsa_next_free_vgpr {NV + NA}',
                   '  .amdhsa_next_free_sgpr 100',
                   f'  .amdhsa_accum_offset {NV}',
                   '  .amdhsa_group_segment_fixed_size 0',
                   '  .amdhsa_kernarg_size 64',
                   '  .amdhsa_user_sgpr_count 2',
                   '  .amdhsa_user_sgpr_kernarg_segment_ptr 1',
                   '  .amdhsa_system_sgpr_workgroup_id_x 1',
                   '  .amdhsa_float_denorm_mode_32 3',
                   '.end_amdhsa_kernel']
        return '\n'.join(self.o) + '\n'


if __name__ == '__main__':
    kw = {}
    for a in sys.argv[2:]:
        k, v = a.split('=')
        kw[k] = int(v) if v.isdigit() else v
    open(sys.argv[1], 'w').write(Gen(**kw).build())
```

```python
import re
import sys

NAME = 'standalone__gqa_block_cached__sampling_kernel'

WS_G = 0
WS_Q = 0x1000
WS_X = 0x2c000
WS_C = 0x30000
WS_P = 0x40000
WS_ML = 0x140000
WS_Y = 0x180000
WS_T = 0x280000
WS_B = 0x300000
WS_SIZE = 0x330000

L_WQ = 0x6a00
L_H = 0x3800
L_o = 0x5c00
L_FL = 0x6500
L_Q = 0x6600
LDS_SIZE = 0x14a00

sK, sV, sWS, sX, sWQ, sWO, sOUT = 20, 24, 28, 32, 36, 40, 44
sTAG, sG, sC1, sSLO, sSHI, sKO, sVO, sT0, sT1, sCNT, sTO = 52, 53, 54, 55, 56, 57, 58, 59, 60, 61, 62
sMG1, sMG2, sCB = 64, 66, 68
sOWN, sISS, sTK, sGB = 48, 49, 50, 51
sSAME = 63
sU = 70
sTS = 80

vLANE, vKOFF, vVOFF, vM, vL, vMA, vMB = 0, 1, 2, 3, 4, 5, 6
vT = 7
vS = 16
vPA, vPB = 24, 28
vB = 32
vAL = 44
vC, vG_ = 46, 47
vV = (48, 112)
vO = 176
vPUB = 208
NV = 228
aK = (0, 64)
aQ = 128
NA = 160


def srd(n):
    return f's[{n}:{n+3}]'


def vr(n, k=4):
    return f'v[{n}:{n+k-1}]'


def ar(n, k=4):
    return f'a[{n}:{n+k-1}]'


class Gen:
    def __init__(self, **kw):
        self.o = []
        self.uid = 0
        self.pend = []
        d = dict(ts=0, timeout=1 << 18, kf=1, vf=0, sd=32, notail=0, noq=0, nowo=0, wolate=1, nocomp=0, noprod=0,
                 bar0=1, nopoll=0, pollstart=1, psleep=0, nogather=0, p2wait=0, qdelay=0, kpol='nt', vpol='nt', S=61, nset=1, stag=6, spec=16, g44=0, womid=0, remap=1, bper=4, l2=1, r2=1)
        for k in kw:
            assert k in d, k
        d.update(kw)
        self.__dict__.update(d)

    def A(self, s):
        if s.startswith('buffer_'):
            m = re.search(r'offset:(\d+)', s)
            assert not m or int(m.group(1)) < 4096, s
        self.o.append('    ' + s)

    def hstore(self, data, voff, soff, imm=0):
        o = f' offset:{imm}' if imm else ''
        self.A(f'buffer_store_dwordx4 {data}, {voff}, {srd(sWS)}, s{soff} offen{o}')
        self.pend.append((data, voff, soff, imm))

    def hflush(self, tmp):
        last = None
        for data, voff, soff, imm in self.pend:
            if soff != last:
                self.A(f's_add_u32 s{tmp}, s{soff}, {WS_B}')
                last = soff
            o = f' offset:{imm}' if imm else ''
            self.A(f'buffer_store_dwordx4 {data}, {voff}, {srd(sWS)}, s{tmp} offen{o} sc1')
        self.pend = []

    def L(self, s):
        self.o.append(s + ':')

    def lab(self, p):
        self.uid += 1
        return f'{p}_{self.uid}'

    def stamp(self, i):
        if self.ts:
            n = sTS + 2 * i
            self.A(f's_memrealtime s[{n}:{n+1}]')

    def prologue(self):
        A = self.A
        A('s_cmp_ge_u32 s2, 256')
        A('s_cbranch_scc1 M_end')
        A('s_load_dwordx16 s[4:19], s[0:1], 0')
        if self.remap:
            A(f's_and_b32 s{sU}, s2, 7')
            A(f's_lshl_b32 s{sU}, s{sU}, 2')
            A(f's_bfe_u32 s{sU+1}, s2, {(2 << 16) | 3}')
            A(f's_and_b32 s2, s2, 0xe0')
            A(f's_or_b32 s2, s2, s{sU}')
            A(f's_or_b32 s2, s2, s{sU+1}')
        A(f'v_lshrrev_b32 v{vT}, 6, v0')
        A(f'v_and_b32 v{vLANE}, 63, v0')
        A(f'v_readfirstlane_b32 s3, v{vT}')
        A(f'v_mov_b32 v{vT+1}, {L_FL}')
        A(f'v_mov_b32 v{vS}, 0')
        A(f'v_mov_b32 v{vS+1}, 0')
        A(f'v_mov_b32 v{vS+2}, 0')
        A(f'v_mov_b32 v{vS+3}, 0')
        A(f'ds_write_b128 v{vT+1}, {vr(vS)}')
        A(f'ds_write_b128 v{vT+1}, {vr(vS)} offset:16')
        A(f'v_and_b32 v{vC}, 15, v{vLANE}')
        A(f'v_lshrrev_b32 v{vG_}, 4, v{vLANE}')
        A(f'v_lshlrev_b32 v{vKOFF}, 9, v{vC}')
        A(f'v_lshl_add_u32 v{vKOFF}, v{vG_}, 4, v{vKOFF}')
        A(f'v_lshlrev_b32 v{vVOFF}, 11, v{vG_}')
        A(f'v_lshl_add_u32 v{vVOFF}, v{vC}, 4, v{vVOFF}')
        A(f's_lshl_b32 s{sKO}, s2, 20')
        A(f's_lshl_b32 s{sT0}, s3, 15')
        A(f's_add_u32 s{sKO}, s{sKO}, s{sT0}')
        A(f's_mov_b32 s{sVO}, s{sKO}')
        for n, size in ((sK, 0x10000000), (sV, 0x10000000), (sWS, WS_SIZE), (sX, 8 * 448 * 2), (sWQ, 448 * 4096 * 2),
                        (sWO, 4096 * 448 * 2), (sOUT, 8 * 448 * 2)):
            A(f's_mov_b32 s{n+2}, {size:#x}')
            A(f's_mov_b32 s{n+3}, 0x00020000')
        A(f's_mov_b32 s{sTO}, {self.timeout}')
        A(f's_mov_b32 s{sC1}, 0x3db8aa3b')
        A(f's_mov_b32 s{sSLO}, 0x05040100')
        A(f's_mov_b32 s{sSHI}, 0x07060302')
        A('s_waitcnt lgkmcnt(0)')
        for n, p in ((sX, 4), (sWQ, 10), (sK, 6), (sV, 8), (sWS, 18), (sWO, 12), (sOUT, 14)):
            A(f's_mov_b64 s[{n}:{n+1}], s[{p}:{p+1}]')

    def masks(self):
        A = self.A
        A(f'v_and_b32 v{vT+1}, 1, v{vG_}')
        A(f'v_and_b32 v{vT+2}, 2, v{vG_}')
        A(f'v_cmp_ne_u32 s[{sMG1}:{sMG1+1}], 0, v{vT+1}')
        A(f'v_cmp_ne_u32 s[{sMG2}:{sMG2+1}], 0, v{vT+2}')

    def wait_flag(self, word, also_tag=False):
        A = self.A
        lw, ok = self.lab('W'), self.lab('K')
        A(f'v_mov_b32 v{vT+1}, {L_FL}')
        A(f's_mov_b32 s{sU+5}, {self.timeout * 8}')
        self.L(lw)
        A(f'ds_read_b128 {vr(vB)}, v{vT+1} offset:{(word >> 2) * 16}')
        A(f's_sub_u32 s{sU+5}, s{sU+5}, 1')
        A(f's_cmp_eq_u32 s{sU+5}, 0')
        A('s_cbranch_scc1 M_end')
        A('s_waitcnt lgkmcnt(0)')
        A(f'v_readfirstlane_b32 s{sU+9}, v{vB+(word & 3)}')
        if also_tag:
            A(f'v_readfirstlane_b32 s{sTAG}, v{vB+1}')
        else:
            A('s_nop 0')
        A(f's_cmp_lg_u32 s{sU+9}, 0')
        A(f's_cbranch_scc1 {ok}')
        A('s_sleep 1')
        A(f's_branch {lw}')
        self.L(ok)

    def set_flag(self, word):
        A = self.A
        A(f'v_mov_b32 v{vT+1}, {L_FL + 4*word}')
        A(f'v_mov_b32 v{vT+2}, 1')
        A(f'ds_write_b32 v{vT+1}, v{vT+2}')

    QX, QB = 48, 112

    def q_issue(self):
        A = self.A
        A(f's_bfe_u32 s{sU}, s2, {(3 << 16) | 2}')
        A(f's_lshl_b32 s{sU}, s{sU}, 3')
        A(f's_lshr_b32 s{sU+2}, s2, 5')
        A(f's_add_u32 s{sU}, s{sU}, s{sU+2}')
        A(f's_lshr_b32 s{sU+1}, s2, 2')
        A(f's_lshl_b32 s{sU+1}, s{sU+1}, 8')
        A(f's_add_u32 s{sU+1}, s{sU+1}, {WS_C}')
        A(f'v_mov_b32 v{vT+2}, 0')
        A('s_mov_b64 exec, 1')
        A(f'buffer_store_dword v{vT+2}, v{vT+2}, {srd(sWS)}, s{sU+1} offen sc1')
        A('s_mov_b64 exec, -1')
        A(f's_lshl_b32 s{sU+1}, s{sU}, 7')
        A(f'v_lshrrev_b32 v{vT}, 3, v{vLANE}')
        A(f'v_lshlrev_b32 v{vT}, 13, v{vT}')
        A(f'v_and_b32 v{vT+1}, 7, v{vLANE}')
        A(f'v_lshl_add_u32 v{vT}, v{vT+1}, 4, v{vT}')
        A(f'v_and_b32 v{vT+1}, 7, v{vC}')
        A(f'v_mul_u32_u24 v{vT+1}, 896, v{vT+1}')
        A(f'v_lshl_add_u32 v{vT+1}, v{vG_}, 4, v{vT+1}')
        for kt in range(14):
            A(f'buffer_load_dwordx4 {vr(self.QX + 4*kt)}, v{vT+1}, {srd(sX)}, 0 offen offset:{64*kt}')
        for n in range(56):
            A(f's_mov_b32 m0, {L_WQ + n*1024}')
            A(f's_add_u32 s{sU+3}, s{sU+1}, {n*65536}')
            A(f'buffer_load_dwordx4 v{vT}, {srd(sWQ)}, s{sU+3} offen nt lds')

    def q_tag(self):
        A = self.A
        A(f's_lshr_b32 s{sU+4}, s2, 2')
        A(f's_lshl_b32 s{sU+4}, s{sU+4}, 11')
        A(f's_add_u32 s{sU+4}, s{sU+4}, {WS_Q}')
        A(f'v_lshlrev_b32 v{vT}, 4, v{vLANE}')
        A(f'v_lshlrev_b32 v{vT+7}, 7, v{vG_}')
        A(f'v_bfe_u32 v{vT+4}, v{vC}, 2, 1')
        A(f'v_lshl_add_u32 v{vT+7}, v{vT+4}, 6, v{vT+7}')
        A(f'v_lshrrev_b32 v{vT+4}, 3, v{vC}')
        A(f'v_lshl_add_u32 v{vT+7}, v{vT+4}, 5, v{vT+7}')
        A(f'v_and_b32 v{vT+4}, 3, v{vC}')
        A(f'v_lshl_add_u32 v{vT+7}, v{vT+4}, 3, v{vT+7}')
        A(f'v_add_u32 v{vT+7}, {L_Q}, v{vT+7}')
        A('s_waitcnt lgkmcnt(0)')
        A(f's_add_u32 s{sG}, s{sG}, 1')
        A(f's_mul_i32 s{sTAG}, s{sG}, 0x9e3779b1')
        A(f's_xor_b32 s{sTAG}, s{sTAG}, 0x5bd1e995')
        A(f'v_mov_b32 v{vT+6}, s{sTAG}')

    def q_compute(self):
        A = self.A
        QX, QB = self.QX, self.QB
        DQ = vO
        A(f'v_lshrrev_b32 v{vT+2}, 2, v{vC}')
        A(f'v_lshl_add_u32 v{vT+2}, v{vG_}, 3, v{vT+2}')
        A(f'v_lshlrev_b32 v{vT+2}, 7, v{vT+2}')
        A(f'v_and_b32 v{vT+3}, 3, v{vC}')
        A(f'v_lshl_add_u32 v{vT+2}, v{vT+3}, 3, v{vT+2}')
        A(f'v_add_u32 v{vT+2}, {L_WQ}, v{vT+2}')
        A(f'v_and_b32 v{vT+3}, 7, v{vC}')
        A(f'v_lshlrev_b32 v{vT+3}, 14, v{vT+3}')
        A(f'v_lshrrev_b32 v{vT+4}, 3, v{vC}')
        A(f'v_cmp_ne_u32 s[{sMG1}:{sMG1+1}], 0, v{vT+4}')
        A(f'v_lshl_add_u32 v{vT+3}, v{vT+4}, 6, v{vT+3}')
        A(f'v_lshl_add_u32 v{vT+3}, v{vG_}, 4, v{vT+3}')
        A(f's_lshl_b32 s{sU+1}, s{sU}, 8')
        A(f's_add_u32 s{sU+1}, s{sU+1}, {WS_Q}')
        for q in range(4):
            A(f'v_mov_b32 v{vS + 2*q + 1}, s{sTAG}')

        def reads(kt):
            A(f's_waitcnt vmcnt({53 - 4*kt})')
            for ct in range(4):
                r = QB + (kt & 1)*16 + ct*4
                A(f'ds_read_b64_tr_b16 {vr(r, 2)}, v{vT+2} offset:{kt*4096 + ct*32}')
                A(f'ds_read_b64_tr_b16 {vr(r + 2, 2)}, v{vT+2} offset:{kt*4096 + ct*32 + 512}')
        reads(0)
        for kt in range(14):
            if kt < 13:
                reads(kt + 1)
                A('s_waitcnt lgkmcnt(8)')
            else:
                self.stamp(3)
                A('s_waitcnt lgkmcnt(0)')
            for ct in range(4):
                c = '0' if kt == 0 else vr(DQ + 4*ct)
                A(f'v_mfma_f32_16x16x32_bf16 {vr(DQ + 4*ct)}, {vr(QB + (kt & 1)*16 + 4*ct)}, {vr(QX + 4*kt)}, {c}')
        A('s_nop 7')
        for st in range(2):
            for r in range(4):
                A(f'v_cndmask_b32 v{vB + r}, v{DQ + 4*st + r}, v{DQ + 8 + 4*st + r}, s[{sMG1}:{sMG1+1}]')
            A(f'v_cvt_pk_bf16_f32 v{vS + 4*st}, v{vB}, v{vB+1}')
            A(f'v_cvt_pk_bf16_f32 v{vS + 4*st + 2}, v{vB+2}, v{vB+3}')
            self.hstore(vr(vS + 4*st), f'v{vT+3}', sU+1, 128*st)
        self.hflush(sU+2)

    def q_gather(self):
        A = self.A
        F = vV[0]
        if self.qdelay:
            self.wait_flag(2)
        A(f'v_mov_b32 v{vT+8}, {L_FL}')
        A(f'v_mov_b32 v{vT+5}, 1')
        self.L('M_qpoll')
        A(f's_and_b32 s{sU+1}, s{sTO}, {self.bper - 1}')
        A(f's_cmp_eq_u32 s{sU+1}, 1')
        A(f's_cselect_b32 s{sU+1}, {WS_B}, 0')
        A(f's_add_u32 s{sU+1}, s{sU+1}, s{sU+4}')
        for n in range(2):
            A(f'buffer_load_dwordx4 {vr(F + 4*n)}, v{vT}, {srd(sWS)}, s{sU+1} offen offset:{1024*n} sc1')
        A('s_waitcnt vmcnt(0)')
        for q in range(4):
            A(f'v_xor_b32 v{F + 2*q + 1}, s{sTAG}, v{F + 2*q + 1}')
        A(f'v_or3_b32 v{vT+2}, v{F+1}, v{F+3}, v{F+5}')
        A(f'v_or_b32 v{vT+2}, v{vT+2}, v{F+7}')
        A(f'v_cmp_ne_u32 vcc, 0, v{vT+2}')
        self.poll_tail('M_qpoll')
        A(f'ds_write2_b32 v{vT+7}, v{F}, v{F+2} offset0:0 offset1:1')
        A(f'ds_write2_b32 v{vT+7}, v{F+4}, v{F+6} offset0:128 offset1:129')
        A(f'ds_write_b64 v{vT+8}, {vr(vT+5, 2)}')

    def poll_tail(self, lab):
        A = self.A
        A(f's_sub_u32 s{sTO}, s{sTO}, 1')
        A(f's_cmp_eq_u32 s{sTO}, 0')
        A('s_cbranch_scc1 M_end')
        A(f's_cbranch_vccnz {lab}')

    def k_load(self, buf, j):
        so = f's{sT0}' if j >> 3 else f's{sKO}'
        self.A(f'buffer_load_dwordx4 {ar(aK[buf] + 4*j)}, v{vKOFF}, {srd(sK)}, {so} offen offset:{(j & 7)*64} {self.kpol}')

    def v_load(self, buf, half, i):
        so = f's{sT1}' if i >> 2 else f's{sVO}'
        self.A(f'buffer_load_dwordx4 {vr(vV[buf] + half*32 + 4*i)}, v{vVOFF}, {srd(sV)}, {so} offen '
               f'offset:{(i & 3)*512 + half*256} {self.vpol}')

    def k_issue(self, buf, step=16384):
        self.A(f's_add_u32 s{sT0}, s{sKO}, 8192')
        for j in range(16):
            self.k_load(buf, j)
        self.A(f's_add_u32 s{sKO}, s{sKO}, {step}')

    def v_issue(self, buf, step=16384):
        self.A(f's_add_u32 s{sT1}, s{sVO}, 8192')
        if self.vf:
            for half in range(2):
                for i in range(8):
                    self.v_load(buf, half, i)
        else:
            for i in range(8):
                for half in range(2):
                    self.v_load(buf, half, i)
        self.A(f's_add_u32 s{sVO}, s{sVO}, {step}')

    def xlane(self, t0, t1, op):
        A = self.A
        for ins in ('v_permlane16_swap_b32', 'v_permlane32_swap_b32'):
            A(f'v_mov_b32 v{t1}, v{t0}')
            A('s_nop 1')
            A(f'{ins} v{t0}, v{t1}')
            A('s_nop 0')
            A(f'{op} v{t0}, v{t0}, v{t1}')

    def tile(self, buf, refill, wk, wv):
        A0 = self.A
        def A(x):
            if self.nocomp and (x.startswith('v_') or x.startswith('s_nop')):
                return
            A0(x)
        A(f's_waitcnt vmcnt({wk})')
        kf = self.kf and refill
        if kf:
            A(f's_add_u32 s{sT0}, s{sKO}, 8192')
        for j in range(16):
            T, s = j >> 3, j & 7
            c = '0' if s == 0 else vr(vS + 4*T)
            A(f'v_mfma_f32_16x16x32_bf16 {vr(vS + 4*T)}, {ar(aK[buf] + 4*j)}, {ar(aQ + 4*s)}, {c}')
            if kf:
                self.k_load(buf, j)
        if kf:
            A(f's_add_u32 s{sKO}, s{sKO}, 16384')
            A('s_nop 5')
        elif refill:
            self.k_issue(buf)
        else:
            A('s_nop 6')
        t0, t1, t2, al = vT, vT + 1, vT + 2, vT + 3
        A(f'v_max3_f32 v{t0}, v{vS}, v{vS+1}, v{vS+2}')
        A(f'v_max3_f32 v{t0}, v{t0}, v{vS+3}, v{vS+4}')
        A(f'v_max3_f32 v{t0}, v{t0}, v{vS+5}, v{vS+6}')
        A(f'v_max_f32 v{t0}, v{t0}, v{vS+7}')
        self.xlane(t0, t1, 'v_max_f32')
        A(f'v_mul_f32 v{t0}, s{sC1}, v{t0}')
        A(f'v_max_f32 v{t0}, v{vM}, v{t0}')
        A(f'v_sub_f32 v{t1}, v{vM}, v{t0}')
        A(f'v_exp_f32 v{al}, v{t1}')
        A(f'v_mov_b32 v{vM}, v{t0}')
        for e in range(8):
            A(f'v_fma_f32 v{vS+e}, v{vS+e}, s{sC1}, -v{t0}')
        for e in range(8):
            A(f'v_exp_f32 v{vS+e}, v{vS+e}')
        A(f'v_mov_b32_dpp v{vAL}, v{al} quad_perm:[0,0,2,2] row_mask:0xf bank_mask:0xf')
        A(f'v_mov_b32_dpp v{vAL+1}, v{al} quad_perm:[1,1,3,3] row_mask:0xf bank_mask:0xf')
        for u in range(4):
            A(f'v_cvt_pk_bf16_f32 v{vPB+u}, v{vS+2*u}, v{vS+2*u+1}')
        A(f'v_add_f32 v{t1}, v{vS}, v{vS+1}')
        A(f'v_add_f32 v{t2}, v{vS+2}, v{vS+3}')
        A(f'v_add_f32 v{t0}, v{vS+4}, v{vS+5}')
        A(f'v_add_f32 v{t1}, v{t1}, v{t2}')
        A(f'v_add_f32 v{t2}, v{vS+6}, v{vS+7}')
        A(f'v_add_f32 v{t0}, v{t0}, v{t2}')
        A(f'v_add_f32 v{t1}, v{t1}, v{t0}')
        A(f'v_fma_f32 v{vL}, v{vL}, v{al}, v{t1}')
        for u in range(4):
            A(f'v_and_b32 v{vPA+u}, v{vMA}, v{vPB+u}')
            A(f'v_and_b32 v{vPB+u}, v{vMB}, v{vPB+u}')
        for j in range(16):
            A(f'v_pk_mul_f32 {vr(vO + 2*j, 2)}, {vr(vO + 2*j, 2)}, {vr(vAL, 2)}')
        A(f's_waitcnt vmcnt({wv})')
        vf = self.vf and refill
        if vf:
            A(f's_add_u32 s{sT1}, s{sVO}, 8192')
        for half in range(2):
            P = vPB if half else vPA

            def perms(j):
                b = vB + 4 * (j % 3)
                t = j >> 1
                sel = sSHI if j & 1 else sSLO
                for u in range(4):
                    lo = vV[buf] + half*32 + 4*(2*u) + t
                    hi = vV[buf] + half*32 + 4*(2*u + 1) + t
                    A(f'v_perm_b32 v{b+u}, v{hi}, v{lo}, s{sel}')

            perms(0)
            for j in range(8):
                if j < 7:
                    perms(j + 1)
                else:
                    A('s_nop 1')
                A(f'v_mfma_f32_16x16x32_bf16 {vr(vO + 4*j)}, {vr(P)}, {vr(vB + 4*(j % 3))}, {vr(vO + 4*j)}')
            if vf:
                for i in range(8):
                    self.v_load(buf, half, i)
        if vf:
            A(f's_add_u32 s{sVO}, s{sVO}, 16384')
        elif refill:
            self.v_issue(buf)

    def stream_init(self):
        A = self.A
        A(f'v_mov_b32 v{vM}, 0xff7fffff')
        A(f'v_mov_b32 v{vL}, 0')
        A(f'v_and_b32 v{vT}, 2, v{vC}')
        A(f'v_cmp_eq_u32 vcc, 0, v{vT}')
        self.masks()
        A(f'v_cndmask_b32 v{vMA}, 0, -1, vcc')
        A(f'v_not_b32 v{vMB}, v{vMA}')
        for j in range(32):
            A(f'v_mov_b32 v{vO+j}, 0')

    def q_frags(self):
        A = self.A
        A(f'v_and_b32 v{vT}, 1, v{vC}')
        A(f'v_lshlrev_b32 v{vT}, 9, v{vT}')
        A(f'v_lshl_add_u32 v{vT}, v{vG_}, 4, v{vT}')
        for s in range(8):
            A(f'ds_read_b128 {ar(aQ + 4*s)}, v{vT} offset:{L_Q + 64*s}')
        A('s_waitcnt lgkmcnt(0)')

    def startup_loads(self, second_step, bar=False):
        A = self.A
        sd = self.sd
        self.k_issue(0)
        if sd < 32:
            A(f's_waitcnt vmcnt({sd - 16})')
        self.v_issue(0)
        if bar:
            A('s_barrier')
        if sd < 48:
            A(f's_waitcnt vmcnt({sd - 16})')
        self.stamp(4)
        self.k_issue(1, second_step)
        if sd < 64:
            A(f's_waitcnt vmcnt({sd - 16})')
        self.v_issue(1, second_step)

    def wo_frags(self):
        A = self.A
        R = vV[0]
        A(f's_and_b32 s{sU+6}, s2, 31')
        A(f's_mul_i32 s{sU+6}, s{sU+6}, {128*896}')
        A(f's_lshr_b32 s{sU+1}, s2, 5')
        A(f's_lshl_b32 s{sU+1}, s{sU+1}, 7')
        A(f's_add_u32 s{sU+6}, s{sU+6}, s{sU+1}')
        A(f'v_mul_u32_u24 v{vT+8}, 7168, v{vG_}')
        A(f'v_lshl_add_u32 v{vT+8}, v{vC}, 3, v{vT+8}')
        for ks in range(4):
            for i in range(8):
                if (i & 3) == 0:
                    A(f's_add_u32 s{sU+1}, s{sU+6}, {ks*32*896 + (i >> 2)*3584}')
                A(f'buffer_load_dwordx2 {vr(R + ks*16 + 2*i, 2)}, v{vT+8}, {srd(sWO)}, s{sU+1} offen offset:{(i & 3)*896} nt')
        for ks in range(4):
            A(f's_waitcnt vmcnt({24 - 8*ks})')
            for t in range(2):
                for u in range(4):
                    lo = R + ks*16 + 2*(2*u) + t
                    hi = R + ks*16 + 2*(2*u+1) + t
                    A(f'v_perm_b32 v{vS + (2*t)*4 + u}, v{hi}, v{lo}, s{sSLO}')
                    A(f'v_perm_b32 v{vS + (2*t+1)*4 + u}, v{hi}, v{lo}, s{sSHI}')
            for q in range(16):
                A(f'v_accvgpr_write_b32 a{ks*16 + q}, v{vS + q}')

    def gather(self, b0, n):
        A = self.A
        D = vV[0]
        ML = vO
        ns = 4 * n
        ALL = (1 << ns) - 1
        sD, sM, sDone, sGot, sRdy, sNeed = sU + 2, sU + 3, sU + 4, sKO, sVO, sT0
        sW = 96
        sRnd, sD2 = 12, 13
        sW2 = 4
        A(f's_and_b32 s{sU}, s2, 28')
        A(f's_add_u32 s{sU}, s{sU}, {b0*32}')
        A(f's_and_b32 s{sU+1}, s2, 3')
        A(f's_lshl_b32 s{sD}, s{sU}, 12')
        A(f's_and_b32 s{sU+6}, s{sU+1}, 1')
        A(f's_lshl_b32 s{sU+6}, s{sU+6}, 9')
        A(f's_add_u32 s{sD}, s{sD}, s{sU+6}')
        A(f's_lshr_b32 s{sU+6}, s{sU+1}, 1')
        A(f's_lshl_b32 s{sU+6}, s{sU+6}, 8')
        A(f's_add_u32 s{sD}, s{sD}, s{sU+6}')
        A(f's_add_u32 s{sD}, s{sD}, {WS_P}')
        A(f's_lshl_b32 s{sM}, s{sU}, 7')
        A(f's_lshr_b32 s{sU+1}, s{sU+1}, 1')
        A(f's_lshl_b32 s{sU+1}, s{sU+1}, 4')
        A(f's_add_u32 s{sM}, s{sM}, s{sU+1}')
        A(f's_add_u32 s{sM}, s{sM}, {WS_ML}')
        A(f'v_lshlrev_b32 v{vT+7}, 10, v{vG_}')
        A(f'v_lshl_add_u32 v{vT+7}, v{vC}, 4, v{vT+7}')
        A(f'v_min_u32 v{vT+8}, {ns-1}, v{vC}')
        A(f'v_lshrrev_b32 v{vT+6}, 2, v{vT+8}')
        A(f'v_lshlrev_b32 v{vT+6}, 12, v{vT+6}')
        A(f'v_and_b32 v{vT+8}, 3, v{vT+8}')
        A(f'v_lshl_add_u32 v{vT+8}, v{vT+8}, 7, v{vT+6}')
        A(f'v_lshlrev_b32 v{vT+6}, 4, v{vC}')
        A(f'v_lshl_add_u32 v{vT+6}, v{vG_}, 2, v{vT+6}')
        A(f's_not_b32 s{sU+1}, s{sTAG}')
        for src in range(ns):
            A(f'v_mov_b32 v{D + 4*src + 1}, s{sU+1}')
        A(f'v_mov_b32 v{ML}, 0')
        A(f'v_mov_b32 v{ML+1}, s{sU+1}')
        A(f'v_mov_b32 v{ML+2}, 1.0')
        A(f'v_mov_b32 v{ML+3}, s{sU+1}')
        A(f's_mov_b32 s{sDone}, 0')
        A(f's_mov_b32 s{sGot}, 0')
        A(f's_mov_b32 s{sRdy}, 0')
        if self.pollstart:
            self.wait_flag(4)
        top = self.lab('G')
        if self.ts and b0 < 6:
            self.stamp(3)
            A(f's_mov_b32 s{sCNT}, 0')
        self.L(top)
        if self.ts and b0 < 6:
            A(f's_add_u32 s{sCNT}, s{sCNT}, 1')
            A(f's_mov_b32 s{sTS+8}, s{sCNT}')
            A(f's_mov_b32 s{sTS+9}, 0')
        A(f's_andn2_b32 s{sU+1}, {ALL}, s{sRdy}')
        A(f's_mov_b32 exec_lo, s{sU+1}')
        A('s_mov_b32 exec_hi, 0')
        A(f'buffer_load_dwordx4 {vr(ML)}, v{vT+8}, {srd(sWS)}, s{sM} offen sc1')
        A('s_mov_b64 exec, -1')
        A(f's_bcnt1_i32_b32 s{sU+1}, s{sU+1}')
        A(f's_cmp_le_u32 s{sU+1}, {self.spec}')
        A(f's_cselect_b32 s{sNeed}, {ALL}, s{sRdy}')
        A(f's_andn2_b32 s{sNeed}, s{sNeed}, s{sGot}')
        for k in range(n):
            sk = self.lab('GS')
            A(f's_bfe_u32 s{sU+1}, s{sNeed}, {(4 << 16) | (4*k)}')
            A(f's_cbranch_scc0 {sk}')
            for sp in range(4):
                src = 4*k + sp
                A(f's_bitcmp1_b32 s{sNeed}, {src}')
                A('s_cselect_b64 exec, -1, 0')
                A(f's_add_u32 s{sU+1}, s{sD}, {k*32*4096 + sp*4096}')
                A(f'buffer_load_dwordx4 {vr(D + 4*src)}, v{vT+7}, {srd(sWS)}, s{sU+1} offen sc1')
            A('s_mov_b64 exec, -1')
            self.L(sk)
        A('s_waitcnt vmcnt(0)')
        A(f'v_xor_b32 v{vT+2}, s{sTAG}, v{ML+1}')
        A(f'v_xor_b32 v{vT+3}, s{sTAG}, v{ML+3}')
        A(f'v_or_b32 v{vT+2}, v{vT+2}, v{vT+3}')
        A(f'v_cmp_eq_u32 vcc, 0, v{vT+2}')
        A(f'v_max_f32_dpp v{vT+2}, v{ML}, v{ML} quad_perm:[1,0,3,2] row_mask:0xf bank_mask:0xf')
        A(f's_and_b32 s{sRdy}, vcc_lo, {ALL}')
        A('s_nop 0')
        A(f'v_max_f32_dpp v{vT+2}, v{vT+2}, v{vT+2} quad_perm:[2,3,0,1] row_mask:0xf bank_mask:0xf')
        A(f'v_sub_f32 v{vT+2}, v{ML}, v{vT+2}')
        A(f'v_exp_f32 v{vT+2}, v{vT+2}')
        A('s_nop 0')
        A(f'v_mul_f32 v{vT+3}, v{vT+2}, v{ML+2}')
        A('s_nop 1')
        A(f'v_add_f32_dpp v{vT+3}, v{vT+3}, v{vT+3} quad_perm:[1,0,3,2] row_mask:0xf bank_mask:0xf')
        A('s_nop 1')
        A(f'v_add_f32_dpp v{vT+3}, v{vT+3}, v{vT+3} quad_perm:[2,3,0,1] row_mask:0xf bank_mask:0xf')
        A(f'v_rcp_f32 v{vT+3}, v{vT+3}')
        A('s_nop 0')
        A(f'v_mul_f32 v{vT+5}, v{vT+2}, v{vT+3}')
        for k in range(n):
            sk = self.lab('GB')
            d = D + 16*k
            A(f's_bitcmp1_b32 s{sDone}, {k}')
            A(f's_cbranch_scc1 {sk}')
            for sp in range(4):
                A(f'v_xor_b32 v{vB+2*sp}, s{sTAG}, v{d+4*sp+1}')
                A(f'v_xor_b32 v{vB+2*sp+1}, s{sTAG}, v{d+4*sp+3}')
            for sp in range(4):
                A(f'v_or_b32 v{vB+2*sp}, v{vB+2*sp}, v{vB+2*sp+1}')
            for sp in range(4):
                A(f'v_cmp_ne_u32 s[{sW2+2*sp}:{sW2+2*sp+1}], 0, v{vB+2*sp}')
            for sp in range(4):
                A(f'v_readlane_b32 s{sW+sp}, v{vT+5}, {4*k + sp}')
            for sp in range(4):
                A(f's_cmp_eq_u64 s[{sW2+2*sp}:{sW2+2*sp+1}], 0')
                A(f's_cselect_b32 s{sU+1}, {1 << (4*k + sp)}, 0')
                A(f's_or_b32 s{sGot}, s{sGot}, s{sU+1}')
            A(f'v_mul_f32 v{vT+3}, s{sW}, v{d}')
            A(f'v_mul_f32 v{vT+4}, s{sW}, v{d+2}')
            A(f's_and_b32 s{sU+1}, s{sGot}, s{sRdy}')
            A(f's_bfe_u32 s{sU+1}, s{sU+1}, {(4 << 16) | (4*k)}')
            A(f's_cmp_lg_u32 s{sU+1}, 15')
            A(f's_cbranch_scc1 {sk}')
            for sp in range(1, 4):
                A(f'v_fmac_f32 v{vT+3}, s{sW+sp}, v{d+4*sp}')
                A(f'v_fmac_f32 v{vT+4}, s{sW+sp}, v{d+4*sp+2}')
            A(f'v_cvt_pk_bf16_f32 v{vT+3}, v{vT+3}, v{vT+4}')
            A(f'ds_write_b32 v{vT+6}, v{vT+3} offset:{L_o + (b0 + k)*272}')
            A(f's_bitset1_b32 s{sDone}, {k}')
            self.L(sk)
        A(f's_sub_u32 s{sTO}, s{sTO}, 1')
        A(f's_cmp_eq_u32 s{sTO}, 0')
        A('s_cbranch_scc1 M_end')
        A(f's_cmp_lg_u32 s{sDone}, {(1 << n) - 1}')
        A(f's_cbranch_scc1 {top}')

    def gemv_prep(self):
        A = self.A
        self.masks()
        A(f'v_and_b32 v{vAL}, 7, v{vC}')
        A(f'v_mul_u32_u24 v{vAL}, 272, v{vAL}')
        A(f'v_lshl_add_u32 v{vAL}, v{vG_}, 4, v{vAL}')
        A(f'v_lshlrev_b32 v{vAL+1}, 4, v{vLANE}')
        A(f's_lshl_b32 s{sU+7}, s2, 12')
        A(f's_add_u32 s{sU+7}, s{sU+7}, {WS_Y}')
        for q in range(8):
            A(f'v_mov_b32 v{vV[1] + 2*q + 1}, s{sTAG}')

    def gemv(self):
        A = self.A
        AF = vO
        Y = vO + 16
        P = vV[1]
        for ks in range(4):
            A(f'ds_read_b128 {vr(AF + 4*ks)}, v{vAL} offset:{L_o + 64*ks}')
        for ks in range(4):
            A(f's_waitcnt lgkmcnt({3-ks})')
            for jj in range(4):
                y = Y + 4*jj
                c = '0' if ks == 0 else vr(y)
                A(f'v_mfma_f32_16x16x32_bf16 {vr(y)}, {vr(AF + 4*ks)}, {ar(ks*16 + jj*4)}, {c}')
        A('s_nop 4')
        for jj in range(4):
            for rr in range(2):
                A(f'v_cndmask_b32 v{P + rr*8 + 2*jj}, v{Y + 4*jj + rr}, v{Y + 4*jj + 2 + rr}, s[{sMG2}:{sMG2+1}]')
            if jj & 1:
                for rr in range(2):
                    A(f'buffer_store_dwordx4 {vr(P + rr*8 + 2*(jj-1))}, v{vAL+1}, {srd(sWS)}, s{sU+7} offen offset:{(rr*2 + (jj >> 1))*1024} sc1')

    SO = (sOWN, sISS, sTK, sCNT, 12, 13, 14, 15)

    def reduce_prep(self):
        A = self.A
        R = vPUB
        SO = self.SO
        A(f's_lshr_b32 s{sU+1}, s2, 5')
        A(f's_lshl_b32 s{sGB}, s{sU+1}, 7')
        A(f's_lshl_b32 s{SO[0]}, s{sU+1}, 17')
        A(f's_and_b32 s{sU+1}, s2, 31')
        A(f's_lshl_b32 s{sU+6}, s{sU+1}, 7')
        A(f's_add_u32 s{SO[0]}, s{SO[0]}, s{sU+6}')
        A(f's_add_u32 s{SO[0]}, s{SO[0]}, {WS_Y}')
        for n in range(1, 8):
            A(f's_add_u32 s{SO[n]}, s{SO[0]}, {n*16384}')
        A(f'v_lshlrev_b32 v{R}, 12, v{vG_}')
        A(f'v_lshl_add_u32 v{R}, v{vC}, 3, v{R}')
        for bit, mul in ((4, 896), (3, 4), (2, 2*896), (1, 4*896), (0, 64)):
            A(f's_bitcmp1_b32 s{sU+1}, {bit}')
            A(f's_cselect_b32 s{sU+6}, {mul}, 0')
            A(f's_add_u32 s{sGB}, s{sGB}, s{sU+6}')
        A(f'v_lshrrev_b32 v{R+1}, 1, v{vC}')
        A(f'v_lshlrev_b32 v{R+1}, 3, v{R+1}')
        A(f'v_and_b32 v{R+2}, 1, v{vC}')
        A(f'v_lshl_add_u32 v{R+1}, v{R+2}, 1, v{R+1}')
        A(f's_load_dword s{sG}, s[18:19], {WS_G}')
        A('s_waitcnt lgkmcnt(0)')

    def reduce(self):
        A = self.A
        R = vPUB
        E = vV[0]
        ns = self.nset

        if self.r2:
            sDn, sC = sKO, 4
            A(f's_not_b32 s{sU+1}, s{sTAG}')
            for n in range(8):
                A(f'v_mov_b32 v{E + 2*n + 1}, s{sU+1}')
            A(f's_mov_b32 s{sDn}, 0')
            self.L('M_p2')
            for n in range(8):
                so = self.SO[n]
                A(f's_bitcmp0_b32 s{sDn}, {n}')
                A('s_cselect_b64 exec, -1, 0')
                A(f'buffer_load_dwordx2 {vr(E + 2*n, 2)}, v{R}, {srd(sWS)}, s{so} offen sc1')
            A('s_mov_b64 exec, -1')
            A(f's_sub_u32 s{sTO}, s{sTO}, 1')
            A(f's_cmp_eq_u32 s{sTO}, 0')
            A('s_cbranch_scc1 M_end')
            A('s_waitcnt vmcnt(0)')
            for q in range(8):
                A(f'v_xor_b32 v{vB + q}, s{sTAG}, v{E + 2*q + 1}')
            A(f'v_or3_b32 v{vT+2}, v{vB}, v{vB+1}, v{vB+2}')
            A(f'v_or3_b32 v{vT+3}, v{vB+3}, v{vB+4}, v{vB+5}')
            A(f'v_or3_b32 v{vT+2}, v{vT+2}, v{vB+6}, v{vB+7}')
            A(f'v_or_b32 v{vT+2}, v{vT+2}, v{vT+3}')
            A(f'v_cmp_ne_u32 vcc, 0, v{vT+2}')
            A(f'v_add_f32 v{vS}, v{E}, v{E+2}')
            A(f'v_add_f32 v{vS+1}, v{E+4}, v{E+6}')
            A(f'v_add_f32 v{vS+2}, v{E+8}, v{E+10}')
            A(f'v_add_f32 v{vS+3}, v{E+12}, v{E+14}')
            A(f'v_add_f32 v{vS}, v{vS}, v{vS+1}')
            A(f'v_add_f32 v{vS+2}, v{vS+2}, v{vS+3}')
            A(f'v_add_f32 v{vT+4}, v{vS}, v{vS+2}')
            A('s_cbranch_vccz M_p2ok')
            for h in range(2):
                for q in range(4):
                    A(f'v_cmp_ne_u32 s[{sC+2*q}:{sC+2*q+1}], 0, v{vB + 4*h + q}')
                A('s_nop 0')
                for q in range(4):
                    A(f's_cmp_eq_u64 s[{sC+2*q}:{sC+2*q+1}], 0')
                    A(f's_cselect_b32 s{sU+1}, {1 << (4*h + q)}, 0')
                    A(f's_or_b32 s{sDn}, s{sDn}, s{sU+1}')
            A('s_branch M_p2')
        else:
            def issue(i):
                for n in range(8):
                    so = self.SO[n]
                    A(f'buffer_load_dwordx2 {vr(E + 16*i + 2*n, 2)}, v{R}, {srd(sWS)}, s{so} offen sc1')
            for i in range(ns):
                issue(i)
                if i < ns - 1:
                    A(f's_sleep {self.stag}')
            self.L('M_p2')
            for i in range(ns):
                e = E + 16*i
                A(f's_waitcnt vmcnt({8*(ns-1)})')
                for q in range(8):
                    A(f'v_xor_b32 v{e + 2*q + 1}, s{sTAG}, v{e + 2*q + 1}')
                A(f'v_or3_b32 v{vT+2}, v{e+1}, v{e+3}, v{e+5}')
                A(f'v_or3_b32 v{vT+3}, v{e+7}, v{e+9}, v{e+11}')
                A(f'v_or3_b32 v{vT+2}, v{vT+2}, v{e+13}, v{e+15}')
                A(f'v_or_b32 v{vT+2}, v{vT+2}, v{vT+3}')
                A(f'v_cmp_ne_u32 vcc, 0, v{vT+2}')
                for st in (1, 2, 4):
                    for q in range(0, 8, 2*st):
                        dst = vT + 4 if st == 4 else e + 2*q
                        A(f'v_add_f32 v{dst}, v{e + 2*q}, v{e + 2*(q+st)}')
                A('s_cbranch_vccz M_p2ok')
                issue(i)
            A(f's_sub_u32 s{sTO}, s{sTO}, 1')
            A(f's_cmp_lg_u32 s{sTO}, 0')
            A('s_cbranch_scc1 M_p2')
            A('s_branch M_end')
        self.L('M_p2ok')
        self.xlane(vT + 4, vT + 5, 'v_add_f32')
        A(f'v_cvt_pk_bf16_f32 v{vT+2}, v{vT+4}, v{vT+4}')
        A('s_mov_b64 exec, 0xffff')
        A(f'buffer_store_short v{vT+2}, v{R+1}, {srd(sOUT)}, s{sGB} offen')
        A('s_mov_b64 exec, 1')
        A('s_cmp_lg_u32 s2, 0')
        A('s_cbranch_scc1 M_nogen')
        A(f'v_mov_b32 v{vT+7}, 0')
        A(f's_add_u32 s{sG}, s{sG}, 1')
        A(f'v_mov_b32 v{vT+8}, s{sG}')
        A(f'buffer_store_dword v{vT+8}, v{vT+7}, {srd(sWS)}, 0 offen offset:{WS_G} sc1')
        self.L('M_nogen')
        A('s_mov_b64 exec, -1')

    def main(self):
        A = self.A
        self.o += ['.globl ' + NAME, '.p2align 8', f'.type {NAME},@function', NAME + ':']
        self.stamp(0)
        if self.ts:
            A('s_memtime s[92:93]')
            for i in range(1, 6):
                A(f's_mov_b64 s[{sTS+2*i}:{sTS+2*i+1}], 0')
        self.prologue()
        A('s_cmp_eq_u32 s3, 2')
        A('s_cbranch_scc1 M_w2')
        if self.bar0 == 2:
            A('s_cmp_eq_u32 s3, 0')
            A('s_cbranch_scc1 M_w0')
        A('s_barrier')
        A('s_cmp_eq_u32 s3, 1')
        A('s_cbranch_scc1 M_w1')
        A('s_cmp_eq_u32 s3, 3')
        A('s_cbranch_scc1 M_w3')

        self.L('M_w0')
        self.startup_loads(16384 * 3, self.bar0 == 2)
        self.stream_init()
        A(f's_waitcnt vmcnt({max(self.sd - 16, 0)})')
        self.set_flag(2)
        self.stamp(3)
        if not self.noq:
            self.wait_flag(0, True)
        self.stamp(1)
        self.q_frags()
        S = self.S
        P = (64 - S) * 4
        PUB = vPUB
        for q in range(10):
            A(f'v_mov_b32 v{PUB + 2*q + 1}, s{sTAG}')
        A(f'v_lshlrev_b32 v{vT+8}, 4, v{vLANE}')
        A(f's_mov_b32 s{sOWN}, s{sKO}')
        A(f's_mov_b32 s{sISS}, 4')
        A(f's_lshr_b32 s{sU}, s2, 2')
        A(f's_lshl_b32 s{sGB}, s{sU}, 22')
        A(f's_add_u32 s{sGB}, s{sGB}, {S * 16384}')
        A(f's_lshl_b32 s{sU}, s{sU}, 8')
        A(f's_add_u32 s{sU}, s{sU}, {WS_C}')
        A(f's_add_u32 s{sCB}, s18, s{sU}')
        A(f's_addc_u32 s{sCB+1}, s19, 0')
        A(f's_mov_b32 s{sTK}, {P}')

        def ticket():
            if P:
                A(f's_mov_b32 s{sTK}, 1')
                A(f's_atomic_add s{sTK}, s[{sCB}:{sCB+1}], 0 glc')

        def next_tile(buf):
            st, jn = self.lab('NS'), self.lab('NJ')
            A(f's_cmp_lt_u32 s{sISS}, {S}')
            A(f's_cbranch_scc1 {st}')
            A('s_waitcnt lgkmcnt(0)')
            A(f's_cmp_ge_u32 s{sTK}, {P}')
            A(f's_cbranch_scc1 M_drain{buf}')
            A(f's_and_b32 s{sU}, s{sTK}, 3')
            A(f's_lshl_b32 s{sU}, s{sU}, 20')
            A(f's_lshr_b32 s{sU+1}, s{sTK}, 2')
            A(f's_lshl_b32 s{sU+1}, s{sU+1}, 14')
            A(f's_add_u32 s{sKO}, s{sGB}, s{sU}')
            A(f's_add_u32 s{sKO}, s{sKO}, s{sU+1}')
            ticket()
            A(f's_branch {jn}')
            self.L(st)
            A(f's_mov_b32 s{sKO}, s{sOWN}')
            A(f's_add_u32 s{sOWN}, s{sOWN}, 16384')
            A(f's_add_u32 s{sISS}, s{sISS}, 1')
            if buf == 0:
                A(f's_cmp_eq_u32 s{sISS}, 41')
                A('s_cbranch_scc1 M_merge')
                self.L('M_merged')
            A(f's_cmp_lg_u32 s{sISS}, {S}')
            A(f's_cbranch_scc1 {jn}')
            ticket()
            self.L(jn)
            A(f's_mov_b32 s{sVO}, s{sKO}')

        self.L('M_loop')
        next_tile(0)
        self.tile(0, True, 48, 48)
        next_tile(1)
        self.tile(1, True, 48, 48)
        A('s_branch M_loop')

        self.L('M_merge')
        self.wait_flag(7)
        A(f's_mov_b32 s{sSAME}, s{sU+9}')
        self.wait_flag(3)
        A(f'v_lshlrev_b32 v{vT+4}, 4, v{vLANE}')
        A(f'ds_read_b128 {vr(vB)}, v{vT+4} offset:{L_H + 8*1024}')
        A('s_waitcnt lgkmcnt(0)')
        A(f'v_max_f32 v{vT}, v{vM}, v{vB}')
        A(f'v_sub_f32 v{vT+1}, v{vM}, v{vT}')
        A(f'v_sub_f32 v{vT+2}, v{vB}, v{vT}')
        A(f'v_exp_f32 v{vT+1}, v{vT+1}')
        A(f'v_exp_f32 v{vT+2}, v{vT+2}')
        A(f'v_mov_b32 v{vM}, v{vT}')
        A('s_nop 0')
        A(f'v_mul_f32 v{vL}, v{vL}, v{vT+1}')
        A(f'v_fmac_f32 v{vL}, v{vB+1}, v{vT+2}')
        A(f'v_mov_b32_dpp v{vAL}, v{vT+1} quad_perm:[0,0,2,2] row_mask:0xf bank_mask:0xf')
        A(f'v_mov_b32_dpp v{vAL+1}, v{vT+1} quad_perm:[1,1,3,3] row_mask:0xf bank_mask:0xf')
        A(f'v_mov_b32_dpp v{vT+5}, v{vT+2} quad_perm:[0,0,2,2] row_mask:0xf bank_mask:0xf')
        A(f'v_mov_b32_dpp v{vT+6}, v{vT+2} quad_perm:[1,1,3,3] row_mask:0xf bank_mask:0xf')
        for half in range(2):
            for j in range(4):
                A(f'ds_read_b128 {vr(vS + 4*j)}, v{vT+4} offset:{L_H + (half*4 + j)*1024}')
            for j in range(8):
                A(f'v_pk_mul_f32 {vr(vO + half*16 + 2*j, 2)}, {vr(vO + half*16 + 2*j, 2)}, {vr(vAL, 2)}')
            A('s_waitcnt lgkmcnt(0)')
            for j in range(8):
                A(f'v_pk_fma_f32 {vr(vO + half*16 + 2*j, 2)}, {vr(vS + 2*j, 2)}, {vr(vT+5, 2)}, {vr(vO + half*16 + 2*j, 2)}')
        A('s_branch M_merged')

        for first in (1, 0):
            self.L(f'M_drain{first}')
            if not self.notail:
                A('s_barrier')
            A(f's_lshl_b32 s{sU}, s2, 12')
            A(f's_add_u32 s{sU}, s{sU}, {WS_P}')
            A(f's_lshl_b32 s{sU+2}, s2, 7')
            A(f's_add_u32 s{sU+2}, s{sU+2}, {WS_ML}')
            self.tile(first, False, 48, 32)
            self.tile(1 - first, False, 16, 0)
            if first == 1:
                A('s_branch M_pub')
        self.L('M_pub')
        self.stamp(2)
        if self.notail:
            A('s_branch M_fin')
        self.xlane(vL, vT, 'v_add_f32')
        A(f'v_mov_b32 v{PUB+16}, v{vM}')
        A(f'v_mov_b32 v{PUB+18}, v{vL}')
        A(f's_cmp_eq_u32 s{sSAME}, 2')
        A('s_cbranch_scc0 M_pubx')
        for pol in ('', ' sc1'):
            if pol:
                self.L('M_pubx')
            for j in range(8):
                A(f'v_cndmask_b32 v{vT+1}, v{vO+4*j}, v{vO+4*j+1}, s[{sMG1}:{sMG1+1}]')
                A(f'v_cndmask_b32 v{vT+2}, v{vO+4*j+2}, v{vO+4*j+3}, s[{sMG1}:{sMG1+1}]')
                A(f'v_cndmask_b32 v{PUB+2*j}, v{vT+1}, v{vT+2}, s[{sMG2}:{sMG2+1}]')
                if j & 1:
                    A(f'buffer_store_dwordx4 {vr(PUB + 2*(j-1))}, v{vT+8}, {srd(sWS)}, s{sU} offen offset:{1024*(j >> 1)}{pol}')
            A('s_mov_b64 exec, 3')
            A(f'buffer_store_dwordx4 {vr(PUB+16)}, v{vT+8}, {srd(sWS)}, s{sU+2} offen{pol}')
            A('s_mov_b64 exec, -1')
            if not pol:
                A('s_branch M_pubd')
        self.L('M_pubd')
        self.set_flag(4)
        self.stamp(3)
        A('s_branch M_fin')

        self.L('M_w1')
        self.stream_init()
        self.wait_flag(2)
        self.startup_loads(16384)
        if not self.noq:
            self.wait_flag(0, True)
        self.stamp(1)
        self.q_frags()
        self.tile(0, False, 48, 32)
        self.tile(1, False, 16, 0)
        A(f'v_lshlrev_b32 v{vT+4}, 4, v{vLANE}')
        A(f'v_mov_b32 v{vB}, v{vM}')
        A(f'v_mov_b32 v{vB+1}, v{vL}')
        A('s_nop 5')
        for j in range(8):
            A(f'ds_write_b128 v{vT+4}, {vr(vO + 4*j)} offset:{L_H + j*1024}')
        A(f'ds_write_b128 v{vT+4}, {vr(vB)} offset:{L_H + 8*1024}')
        self.set_flag(3)
        self.stamp(2)
        if self.notail:
            A('s_branch M_fin')
        if self.noq:
            self.wait_flag(0, True)
        A('s_cmp_ge_u32 s2, 224')
        A('s_cbranch_scc1 M_fin')
        A('s_barrier')
        if self.nogather:
            A('s_branch M_fin')
        self.gather(0, 4 if self.g44 else 3)
        self.set_flag(5)
        A('s_branch M_fin')

        self.L('M_w3')
        if self.notail:
            A('s_branch M_fin')
        A('s_cmp_ge_u32 s2, 224')
        A('s_cbranch_scc1 M_fin')
        if not self.wolate and not self.womid:
            self.wo_frags()
        self.wait_flag(0, True)
        if not self.wolate and self.womid:
            self.wait_flag(3)
            self.wo_frags()
        if not self.wolate:
            self.gemv_prep()
            self.reduce_prep()
        A('s_barrier')
        if self.wolate and not self.nowo:
            self.wo_frags()
        if self.nogather:
            A('s_branch M_fin')
        if self.wolate:
            self.gemv_prep()
            self.reduce_prep()
        self.stamp(3)
        if not self.g44:
            self.gather(6, 2)
        self.wait_flag(5)
        self.wait_flag(6)
        self.stamp(4)
        self.gemv()
        self.stamp(2)
        self.reduce()
        A('s_branch M_fin')

        self.L('M_w2')
        if self.noprod:
            A('s_barrier')
            A('s_branch M_fin')
        A('s_setprio 3')
        A(f's_load_dword s{sG}, s[18:19], {WS_G}')
        if self.bar0 != 1:
            A('s_barrier')
        A(f's_and_b32 s{sU}, s2, 3')
        A(f's_cmp_lg_u32 s{sU}, 0')
        A('s_cbranch_scc1 M_noprod1')
        self.q_issue()
        self.L('M_noprod1')
        if self.bar0 == 1:
            A('s_barrier')
        self.q_tag()
        A(f's_getreg_b32 s{sSAME}, hwreg(HW_REG_XCC_ID, 0, 4)')
        A(f's_bfe_u32 s{sU+7}, s2, {(3 << 16) | 2}')
        A(f's_lshl_b32 s{sU+7}, s{sU+7}, 8')
        A(f's_add_u32 s{sU+7}, s{sU+7}, {WS_X}')
        A(f's_lshr_b32 s{sU+1}, s2, 5')
        A(f's_lshl_b32 s{sU+1}, s{sU+1}, 5')
        A(f's_and_b32 s{sU+2}, s2, 3')
        A(f's_lshl_b32 s{sU+2}, s{sU+2}, 3')
        A(f's_add_u32 s{sU+1}, s{sU+1}, s{sU+2}')
        A(f'v_mov_b32 v{vT+4}, s{sU+1}')
        A(f'v_mov_b32 v{vT+5}, s{sSAME}')
        A('s_mov_b64 exec, 1')
        A(f'buffer_store_dwordx2 {vr(vT+5, 2)}, v{vT+4}, {srd(sWS)}, s{sU+7} offen sc1')
        A('s_mov_b64 exec, -1')
        A(f's_and_b32 s{sU+1}, s2, 3')
        A(f's_cmp_lg_u32 s{sU+1}, 0')
        A('s_cbranch_scc1 M_noprod2')
        self.q_compute()
        self.L('M_noprod2')
        self.stamp(2)
        if self.nopoll:
            A('s_branch M_fin')
        self.q_gather()
        self.stamp(1)
        A('s_setprio 0')
        self.wait_flag(3)
        A(f'v_and_b32 v{vT}, 31, v{vLANE}')
        A(f'v_lshlrev_b32 v{vT}, 3, v{vT}')
        self.L('M_xpoll')
        A(f'buffer_load_dwordx2 {vr(vS, 2)}, v{vT}, {srd(sWS)}, s{sU+7} offen sc1')
        A('s_waitcnt vmcnt(0)')
        A(f'v_cmp_ne_u32 s[{sMG1}:{sMG1+1}], s{sSAME}, v{vS}')
        A(f'v_cmp_ne_u32 vcc, s{sTAG}, v{vS+1}')
        self.poll_tail('M_xpoll')
        A(f's_cmp_eq_u64 s[{sMG1}:{sMG1+1}], 0')
        A(f's_cselect_b32 s{sU+1}, {2 if self.l2 else 1}, 1')
        A(f'v_mov_b32 v{vT+1}, {L_FL + 28}')
        A(f'v_mov_b32 v{vT+2}, s{sU+1}')
        A(f'ds_write_b32 v{vT+1}, v{vT+2}')
        if self.notail:
            A('s_branch M_fin')
        A('s_cmp_ge_u32 s2, 224')
        A('s_cbranch_scc1 M_fin')
        A('s_barrier')
        if self.nogather:
            A('s_branch M_fin')
        self.gather(*((4, 4) if self.g44 else (3, 3)))
        self.set_flag(6)

        self.L('M_fin')
        if self.ts:
            self.stamp(5)
            A('s_memtime s[94:95]')
            A('s_waitcnt lgkmcnt(0)')
            A(f's_lshl_b32 s{sU}, s2, 3')
            A(f's_add_u32 s{sU}, s{sU}, s3')
            A(f's_lshl_b32 s{sU}, s{sU}, 6')
            A(f's_add_u32 s{sU}, s{sU}, {WS_T}')
            A(f'v_mov_b32 v{vT}, 0')
            A('s_mov_b64 exec, 1')
            for i in range(8):
                A(f'v_mov_b32 v{vB}, s{sTS + 2*i}')
                A(f'v_mov_b32 v{vB+1}, s{sTS + 2*i + 1}')
                A(f'buffer_store_dwordx2 {vr(vB, 2)}, v{vT}, {srd(sWS)}, s{sU} offen offset:{8*i}')
                A('s_nop 1')
        self.L('M_end')
        A('s_endpgm')

    def build(self):
        self.o = ['; GQA decode attention block (q-proj + flash-decoding + out-proj) in one launch; generated by bench/gen14.py',
                  f'; @launch grid=(256,1,1) block=(256,1,1) lds={LDS_SIZE}',
                  '.amdgcn_target "amdgcn-amd-amdhsa--gfx950"', '.text']
        self.main()
        self.o += ['.section .rodata,"a"', '.p2align 6',
                   f'.amdhsa_kernel {NAME}',
                   f'  .amdhsa_next_free_vgpr {NV + NA}',
                   '  .amdhsa_next_free_sgpr 100',
                   f'  .amdhsa_accum_offset {NV}',
                   '  .amdhsa_group_segment_fixed_size 0',
                   '  .amdhsa_kernarg_size 64',
                   '  .amdhsa_user_sgpr_count 2',
                   '  .amdhsa_user_sgpr_kernarg_segment_ptr 1',
                   '  .amdhsa_system_sgpr_workgroup_id_x 1',
                   '  .amdhsa_float_denorm_mode_32 3',
                   '.end_amdhsa_kernel']
        return '\n'.join(self.o) + '\n'


if __name__ == '__main__':
    kw = {}
    for a in sys.argv[2:]:
        k, v = a.split('=')
        kw[k] = int(v) if v.isdigit() else v.replace('+', ' ')
    open(sys.argv[1], 'w').write(Gen(**kw).build())
```

```python
import re
import sys

NAME = 'standalone__gqa_block_cached__sampling_kernel'

WS_G = 0
WS_Q = 0x1000
WS_X = 0x2c000
WS_C = 0x30000
WS_P = 0x40000
WS_ML = 0x140000
WS_Y = 0x180000
WS_T = 0x280000
WS_B = 0x300000
WS_SIZE = 0x330000

L_WQ = 0x6a00
L_H = 0x3800
L_o = 0x5c00
L_FL = 0x6500
L_Q = 0x6600
LDS_SIZE = 0x14a00

sK, sV, sWS, sX, sWQ, sWO, sOUT = 20, 24, 28, 32, 36, 40, 44
sTAG, sG, sC1, sSLO, sSHI, sKO, sVO, sT0, sT1, sCNT, sTO = 52, 53, 54, 55, 56, 57, 58, 59, 60, 61, 62
sMG1, sMG2, sCB = 64, 66, 68
sOWN, sISS, sTK, sGB = 48, 49, 50, 51
sSAME = 63
sU = 70
sTS = 80

vLANE, vKOFF, vVOFF, vM, vL, vMA, vMB = 0, 1, 2, 3, 4, 5, 6
vT = 7
vS = 16
vPA, vPB = 24, 28
vB = 32
vAL = 44
vC, vG_ = 46, 47
vV = (48, 112)
vO = 176
vPUB = 208
NV = 228
aK = (0, 64)
aQ = 128
NA = 160


def srd(n):
    return f's[{n}:{n+3}]'


def vr(n, k=4):
    return f'v[{n}:{n+k-1}]'


def ar(n, k=4):
    return f'a[{n}:{n+k-1}]'


class Gen:
    def __init__(self, **kw):
        self.o = []
        self.uid = 0
        self.pend = []
        d = dict(ts=0, timeout=1 << 18, kf=1, vf=0, sd=32, notail=0, noq=0, nowo=0, wolate=1, nocomp=0, noprod=0,
                 bar0=1, nopoll=0, pollstart=1, psleep=0, nogather=0, p2wait=0, qdelay=0, kpol='nt', vpol='nt', S=61, nset=1, stag=6, spec=16, g44=0, womid=0, remap=1, bper=4, l2=1, r2=1, rs=1)
        for k in kw:
            assert k in d, k
        d.update(kw)
        self.__dict__.update(d)

    def A(self, s):
        if s.startswith('buffer_'):
            m = re.search(r'offset:(\d+)', s)
            assert not m or int(m.group(1)) < 4096, s
        self.o.append('    ' + s)

    def hstore(self, data, voff, soff, imm=0):
        o = f' offset:{imm}' if imm else ''
        self.A(f'buffer_store_dwordx4 {data}, {voff}, {srd(sWS)}, s{soff} offen{o}')
        self.pend.append((data, voff, soff, imm))

    def hflush(self, tmp):
        last = None
        for data, voff, soff, imm in self.pend:
            if soff != last:
                self.A(f's_add_u32 s{tmp}, s{soff}, {WS_B}')
                last = soff
            o = f' offset:{imm}' if imm else ''
            self.A(f'buffer_store_dwordx4 {data}, {voff}, {srd(sWS)}, s{tmp} offen{o} sc1')
        self.pend = []

    def L(self, s):
        self.o.append(s + ':')

    def lab(self, p):
        self.uid += 1
        return f'{p}_{self.uid}'

    def stamp(self, i):
        if self.ts:
            n = sTS + 2 * i
            self.A(f's_memrealtime s[{n}:{n+1}]')

    def prologue(self):
        A = self.A
        A('s_cmp_ge_u32 s2, 256')
        A('s_cbranch_scc1 M_end')
        A('s_load_dwordx16 s[4:19], s[0:1], 0')
        if self.remap:
            A(f's_and_b32 s{sU}, s2, 7')
            A(f's_lshl_b32 s{sU}, s{sU}, 2')
            A(f's_bfe_u32 s{sU+1}, s2, {(2 << 16) | 3}')
            A(f's_and_b32 s2, s2, 0xe0')
            A(f's_or_b32 s2, s2, s{sU}')
            A(f's_or_b32 s2, s2, s{sU+1}')
            if self.remap == 2:
                A(f's_cmp_eq_u32 s2, 37')
                A(f's_cselect_b32 s{sU}, 41, s2')
                A(f's_cmp_eq_u32 s2, 41')
                A(f's_cselect_b32 s2, 37, s{sU}')
        A(f'v_lshrrev_b32 v{vT}, 6, v0')
        A(f'v_and_b32 v{vLANE}, 63, v0')
        A(f'v_readfirstlane_b32 s3, v{vT}')
        A(f'v_mov_b32 v{vT+1}, {L_FL}')
        A(f'v_mov_b32 v{vS}, 0')
        A(f'v_mov_b32 v{vS+1}, 0')
        A(f'v_mov_b32 v{vS+2}, 0')
        A(f'v_mov_b32 v{vS+3}, 0')
        A(f'ds_write_b128 v{vT+1}, {vr(vS)}')
        A(f'ds_write_b128 v{vT+1}, {vr(vS)} offset:16')
        A(f'v_and_b32 v{vC}, 15, v{vLANE}')
        A(f'v_lshrrev_b32 v{vG_}, 4, v{vLANE}')
        A(f'v_lshlrev_b32 v{vKOFF}, 9, v{vC}')
        A(f'v_lshl_add_u32 v{vKOFF}, v{vG_}, 4, v{vKOFF}')
        A(f'v_lshlrev_b32 v{vVOFF}, 11, v{vG_}')
        A(f'v_lshl_add_u32 v{vVOFF}, v{vC}, 4, v{vVOFF}')
        A(f's_lshl_b32 s{sKO}, s2, 20')
        A(f's_lshl_b32 s{sT0}, s3, 15')
        A(f's_add_u32 s{sKO}, s{sKO}, s{sT0}')
        A(f's_mov_b32 s{sVO}, s{sKO}')
        for n, size in ((sK, 0x10000000), (sV, 0x10000000), (sWS, WS_SIZE), (sX, 8 * 448 * 2), (sWQ, 448 * 4096 * 2),
                        (sWO, 4096 * 448 * 2), (sOUT, 8 * 448 * 2)):
            A(f's_mov_b32 s{n+2}, {size:#x}')
            A(f's_mov_b32 s{n+3}, 0x00020000')
        A(f's_mov_b32 s{sTO}, {self.timeout}')
        A(f's_mov_b32 s{sC1}, 0x3db8aa3b')
        A(f's_mov_b32 s{sSLO}, 0x05040100')
        A(f's_mov_b32 s{sSHI}, 0x07060302')
        A('s_waitcnt lgkmcnt(0)')
        for n, p in ((sX, 4), (sWQ, 10), (sK, 6), (sV, 8), (sWS, 18), (sWO, 12), (sOUT, 14)):
            A(f's_mov_b64 s[{n}:{n+1}], s[{p}:{p+1}]')

    def masks(self):
        A = self.A
        A(f'v_and_b32 v{vT+1}, 1, v{vG_}')
        A(f'v_and_b32 v{vT+2}, 2, v{vG_}')
        A(f'v_cmp_ne_u32 s[{sMG1}:{sMG1+1}], 0, v{vT+1}')
        A(f'v_cmp_ne_u32 s[{sMG2}:{sMG2+1}], 0, v{vT+2}')

    def wait_flag(self, word, also_tag=False, word2=None):
        A = self.A
        lw, ok = self.lab('W'), self.lab('K')
        A(f'v_mov_b32 v{vT+1}, {L_FL}')
        A(f's_mov_b32 s{sU+5}, {self.timeout * 8}')
        self.L(lw)
        A(f'ds_read_b128 {vr(vB)}, v{vT+1} offset:{(word >> 2) * 16}')
        A(f's_sub_u32 s{sU+5}, s{sU+5}, 1')
        A(f's_cmp_eq_u32 s{sU+5}, 0')
        A('s_cbranch_scc1 M_end')
        A('s_waitcnt lgkmcnt(0)')
        A(f'v_readfirstlane_b32 s{sU+9}, v{vB+(word & 3)}')
        if also_tag:
            A(f'v_readfirstlane_b32 s{sTAG}, v{vB+1}')
        elif word2 is not None:
            A(f'v_readfirstlane_b32 s{sU+1}, v{vB+(word2 & 3)}')
            A('s_nop 0')
            A(f's_and_b32 s{sU+9}, s{sU+9}, s{sU+1}')
        else:
            A('s_nop 0')
        A(f's_cmp_lg_u32 s{sU+9}, 0')
        A(f's_cbranch_scc1 {ok}')
        A('s_sleep 1')
        A(f's_branch {lw}')
        self.L(ok)

    def set_flag(self, word):
        A = self.A
        A(f'v_mov_b32 v{vT+1}, {L_FL + 4*word}')
        A(f'v_mov_b32 v{vT+2}, 1')
        A(f'ds_write_b32 v{vT+1}, v{vT+2}')

    QX, QB = 48, 112

    def q_issue(self):
        A = self.A
        A(f's_bfe_u32 s{sU}, s2, {(3 << 16) | 2}')
        A(f's_lshl_b32 s{sU}, s{sU}, 3')
        A(f's_lshr_b32 s{sU+2}, s2, 5')
        A(f's_add_u32 s{sU}, s{sU}, s{sU+2}')
        A(f's_lshr_b32 s{sU+1}, s2, 2')
        A(f's_lshl_b32 s{sU+1}, s{sU+1}, 8')
        A(f's_add_u32 s{sU+1}, s{sU+1}, {WS_C}')
        A(f'v_mov_b32 v{vT+2}, 0')
        A('s_mov_b64 exec, 1')
        A(f'buffer_store_dword v{vT+2}, v{vT+2}, {srd(sWS)}, s{sU+1} offen sc1')
        A('s_mov_b64 exec, -1')
        A(f's_lshl_b32 s{sU+1}, s{sU}, 7')
        A(f'v_lshrrev_b32 v{vT}, 3, v{vLANE}')
        A(f'v_lshlrev_b32 v{vT}, 13, v{vT}')
        A(f'v_and_b32 v{vT+1}, 7, v{vLANE}')
        A(f'v_lshl_add_u32 v{vT}, v{vT+1}, 4, v{vT}')
        A(f'v_and_b32 v{vT+1}, 7, v{vC}')
        A(f'v_mul_u32_u24 v{vT+1}, 896, v{vT+1}')
        A(f'v_lshl_add_u32 v{vT+1}, v{vG_}, 4, v{vT+1}')
        for kt in range(14):
            A(f'buffer_load_dwordx4 {vr(self.QX + 4*kt)}, v{vT+1}, {srd(sX)}, 0 offen offset:{64*kt}')
        for n in range(56):
            A(f's_mov_b32 m0, {L_WQ + n*1024}')
            A(f's_add_u32 s{sU+3}, s{sU+1}, {n*65536}')
            A(f'buffer_load_dwordx4 v{vT}, {srd(sWQ)}, s{sU+3} offen nt lds')

    def q_tag(self):
        A = self.A
        A(f's_lshr_b32 s{sU+4}, s2, 2')
        A(f's_lshl_b32 s{sU+4}, s{sU+4}, 11')
        A(f's_add_u32 s{sU+4}, s{sU+4}, {WS_Q}')
        A(f'v_lshlrev_b32 v{vT}, 4, v{vLANE}')
        A(f'v_lshlrev_b32 v{vT+7}, 7, v{vG_}')
        A(f'v_bfe_u32 v{vT+4}, v{vC}, 2, 1')
        A(f'v_lshl_add_u32 v{vT+7}, v{vT+4}, 6, v{vT+7}')
        A(f'v_lshrrev_b32 v{vT+4}, 3, v{vC}')
        A(f'v_lshl_add_u32 v{vT+7}, v{vT+4}, 5, v{vT+7}')
        A(f'v_and_b32 v{vT+4}, 3, v{vC}')
        A(f'v_lshl_add_u32 v{vT+7}, v{vT+4}, 3, v{vT+7}')
        A(f'v_add_u32 v{vT+7}, {L_Q}, v{vT+7}')
        A('s_waitcnt lgkmcnt(0)')
        A(f's_add_u32 s{sG}, s{sG}, 1')
        A(f's_mul_i32 s{sTAG}, s{sG}, 0x9e3779b1')
        A(f's_xor_b32 s{sTAG}, s{sTAG}, 0x5bd1e995')
        A(f'v_mov_b32 v{vT+6}, s{sTAG}')

    def q_compute(self):
        A = self.A
        QX, QB = self.QX, self.QB
        DQ = vO
        A(f'v_lshrrev_b32 v{vT+2}, 2, v{vC}')
        A(f'v_lshl_add_u32 v{vT+2}, v{vG_}, 3, v{vT+2}')
        A(f'v_lshlrev_b32 v{vT+2}, 7, v{vT+2}')
        A(f'v_and_b32 v{vT+3}, 3, v{vC}')
        A(f'v_lshl_add_u32 v{vT+2}, v{vT+3}, 3, v{vT+2}')
        A(f'v_add_u32 v{vT+2}, {L_WQ}, v{vT+2}')
        A(f'v_and_b32 v{vT+3}, 7, v{vC}')
        A(f'v_lshlrev_b32 v{vT+3}, 14, v{vT+3}')
        A(f'v_lshrrev_b32 v{vT+4}, 3, v{vC}')
        A(f'v_cmp_ne_u32 s[{sMG1}:{sMG1+1}], 0, v{vT+4}')
        A(f'v_lshl_add_u32 v{vT+3}, v{vT+4}, 6, v{vT+3}')
        A(f'v_lshl_add_u32 v{vT+3}, v{vG_}, 4, v{vT+3}')
        A(f's_lshl_b32 s{sU+1}, s{sU}, 8')
        A(f's_add_u32 s{sU+1}, s{sU+1}, {WS_Q}')
        for q in range(4):
            A(f'v_mov_b32 v{vS + 2*q + 1}, s{sTAG}')

        def reads(kt):
            A(f's_waitcnt vmcnt({53 - 4*kt})')
            for ct in range(4):
                r = QB + (kt & 1)*16 + ct*4
                A(f'ds_read_b64_tr_b16 {vr(r, 2)}, v{vT+2} offset:{kt*4096 + ct*32}')
                A(f'ds_read_b64_tr_b16 {vr(r + 2, 2)}, v{vT+2} offset:{kt*4096 + ct*32 + 512}')
        reads(0)
        for kt in range(14):
            if kt < 13:
                reads(kt + 1)
                A('s_waitcnt lgkmcnt(8)')
            else:
                self.stamp(3)
                A('s_waitcnt lgkmcnt(0)')
            for ct in range(4):
                c = '0' if kt == 0 else vr(DQ + 4*ct)
                A(f'v_mfma_f32_16x16x32_bf16 {vr(DQ + 4*ct)}, {vr(QB + (kt & 1)*16 + 4*ct)}, {vr(QX + 4*kt)}, {c}')
        A('s_nop 7')
        for st in range(2):
            for r in range(4):
                A(f'v_cndmask_b32 v{vB + r}, v{DQ + 4*st + r}, v{DQ + 8 + 4*st + r}, s[{sMG1}:{sMG1+1}]')
            A(f'v_cvt_pk_bf16_f32 v{vS + 4*st}, v{vB}, v{vB+1}')
            A(f'v_cvt_pk_bf16_f32 v{vS + 4*st + 2}, v{vB+2}, v{vB+3}')
            self.hstore(vr(vS + 4*st), f'v{vT+3}', sU+1, 128*st)
        self.hflush(sU+2)

    def q_gather(self):
        A = self.A
        F = vV[0]
        if self.qdelay:
            self.wait_flag(2)
        A(f'v_mov_b32 v{vT+8}, {L_FL}')
        A(f'v_mov_b32 v{vT+5}, 1')
        self.L('M_qpoll')
        A(f's_and_b32 s{sU+1}, s{sTO}, {self.bper - 1}')
        A(f's_cmp_eq_u32 s{sU+1}, 1')
        A(f's_cselect_b32 s{sU+1}, {WS_B}, 0')
        A(f's_add_u32 s{sU+1}, s{sU+1}, s{sU+4}')
        for n in range(2):
            A(f'buffer_load_dwordx4 {vr(F + 4*n)}, v{vT}, {srd(sWS)}, s{sU+1} offen offset:{1024*n} sc1')
        A('s_waitcnt vmcnt(0)')
        for q in range(4):
            A(f'v_xor_b32 v{F + 2*q + 1}, s{sTAG}, v{F + 2*q + 1}')
        A(f'v_or3_b32 v{vT+2}, v{F+1}, v{F+3}, v{F+5}')
        A(f'v_or_b32 v{vT+2}, v{vT+2}, v{F+7}')
        A(f'v_cmp_ne_u32 vcc, 0, v{vT+2}')
        self.poll_tail('M_qpoll')
        A(f'ds_write2_b32 v{vT+7}, v{F}, v{F+2} offset0:0 offset1:1')
        A(f'ds_write2_b32 v{vT+7}, v{F+4}, v{F+6} offset0:128 offset1:129')
        A(f'ds_write_b64 v{vT+8}, {vr(vT+5, 2)}')

    def poll_tail(self, lab):
        A = self.A
        A(f's_sub_u32 s{sTO}, s{sTO}, 1')
        A(f's_cmp_eq_u32 s{sTO}, 0')
        A('s_cbranch_scc1 M_end')
        A(f's_cbranch_vccnz {lab}')

    def k_load(self, buf, j):
        so = f's{sT0}' if j >> 3 else f's{sKO}'
        self.A(f'buffer_load_dwordx4 {ar(aK[buf] + 4*j)}, v{vKOFF}, {srd(sK)}, {so} offen offset:{(j & 7)*64} {self.kpol}')

    def v_load(self, buf, half, i):
        so = f's{sT1}' if i >> 2 else f's{sVO}'
        self.A(f'buffer_load_dwordx4 {vr(vV[buf] + half*32 + 4*i)}, v{vVOFF}, {srd(sV)}, {so} offen '
               f'offset:{(i & 3)*512 + half*256} {self.vpol}')

    def k_issue(self, buf, step=16384):
        self.A(f's_add_u32 s{sT0}, s{sKO}, 8192')
        for j in range(16):
            self.k_load(buf, j)
        self.A(f's_add_u32 s{sKO}, s{sKO}, {step}')

    def v_issue(self, buf, step=16384):
        self.A(f's_add_u32 s{sT1}, s{sVO}, 8192')
        if self.vf:
            for half in range(2):
                for i in range(8):
                    self.v_load(buf, half, i)
        else:
            for i in range(8):
                for half in range(2):
                    self.v_load(buf, half, i)
        self.A(f's_add_u32 s{sVO}, s{sVO}, {step}')

    def xlane(self, t0, t1, op):
        A = self.A
        for ins in ('v_permlane16_swap_b32', 'v_permlane32_swap_b32'):
            A(f'v_mov_b32 v{t1}, v{t0}')
            A('s_nop 1')
            A(f'{ins} v{t0}, v{t1}')
            A('s_nop 0')
            A(f'{op} v{t0}, v{t0}, v{t1}')

    def tile(self, buf, refill, wk, wv):
        A0 = self.A
        def A(x):
            if self.nocomp and (x.startswith('v_') or x.startswith('s_nop')):
                return
            A0(x)
        A(f's_waitcnt vmcnt({wk})')
        kf = self.kf and refill
        if kf:
            A(f's_add_u32 s{sT0}, s{sKO}, 8192')
        for j in range(16):
            T, s = j >> 3, j & 7
            c = '0' if s == 0 else vr(vS + 4*T)
            A(f'v_mfma_f32_16x16x32_bf16 {vr(vS + 4*T)}, {ar(aK[buf] + 4*j)}, {ar(aQ + 4*s)}, {c}')
            if kf:
                self.k_load(buf, j)
        if kf:
            A(f's_add_u32 s{sKO}, s{sKO}, 16384')
            A('s_nop 5')
        elif refill:
            self.k_issue(buf)
        else:
            A('s_nop 6')
        t0, t1, t2, al = vT, vT + 1, vT + 2, vT + 3
        if self.rs:
            for u in range(4):
                A(f'v_cvt_pk_bf16_f32 v{vPA+u}, v{vS+2*u}, v{vS+2*u+1}')
            for u in range(4):
                A(f'v_lshlrev_b32 v{vS+2*u}, 16, v{vPA+u}')
                A(f'v_and_b32 v{vS+2*u+1}, 0xffff0000, v{vPA+u}')
        A(f'v_max3_f32 v{t0}, v{vS}, v{vS+1}, v{vS+2}')
        A(f'v_max3_f32 v{t0}, v{t0}, v{vS+3}, v{vS+4}')
        A(f'v_max3_f32 v{t0}, v{t0}, v{vS+5}, v{vS+6}')
        A(f'v_max_f32 v{t0}, v{t0}, v{vS+7}')
        self.xlane(t0, t1, 'v_max_f32')
        A(f'v_mul_f32 v{t0}, s{sC1}, v{t0}')
        A(f'v_max_f32 v{t0}, v{vM}, v{t0}')
        A(f'v_sub_f32 v{t1}, v{vM}, v{t0}')
        A(f'v_exp_f32 v{al}, v{t1}')
        A(f'v_mov_b32 v{vM}, v{t0}')
        for e in range(8):
            A(f'v_fma_f32 v{vS+e}, v{vS+e}, s{sC1}, -v{t0}')
        for e in range(8):
            A(f'v_exp_f32 v{vS+e}, v{vS+e}')
        A(f'v_mov_b32_dpp v{vAL}, v{al} quad_perm:[0,0,2,2] row_mask:0xf bank_mask:0xf')
        A(f'v_mov_b32_dpp v{vAL+1}, v{al} quad_perm:[1,1,3,3] row_mask:0xf bank_mask:0xf')
        for u in range(4):
            A(f'v_cvt_pk_bf16_f32 v{vPB+u}, v{vS+2*u}, v{vS+2*u+1}')
        A(f'v_add_f32 v{t1}, v{vS}, v{vS+1}')
        A(f'v_add_f32 v{t2}, v{vS+2}, v{vS+3}')
        A(f'v_add_f32 v{t0}, v{vS+4}, v{vS+5}')
        A(f'v_add_f32 v{t1}, v{t1}, v{t2}')
        A(f'v_add_f32 v{t2}, v{vS+6}, v{vS+7}')
        A(f'v_add_f32 v{t0}, v{t0}, v{t2}')
        A(f'v_add_f32 v{t1}, v{t1}, v{t0}')
        A(f'v_fma_f32 v{vL}, v{vL}, v{al}, v{t1}')
        for u in range(4):
            A(f'v_and_b32 v{vPA+u}, v{vMA}, v{vPB+u}')
            A(f'v_and_b32 v{vPB+u}, v{vMB}, v{vPB+u}')
        for j in range(16):
            A(f'v_pk_mul_f32 {vr(vO + 2*j, 2)}, {vr(vO + 2*j, 2)}, {vr(vAL, 2)}')
        A(f's_waitcnt vmcnt({wv})')
        vf = self.vf and refill
        if vf:
            A(f's_add_u32 s{sT1}, s{sVO}, 8192')
        for half in range(2):
            P = vPB if half else vPA

            def perms(j):
                b = vB + 4 * (j % 3)
                t = j >> 1
                sel = sSHI if j & 1 else sSLO
                for u in range(4):
                    lo = vV[buf] + half*32 + 4*(2*u) + t
                    hi = vV[buf] + half*32 + 4*(2*u + 1) + t
                    A(f'v_perm_b32 v{b+u}, v{hi}, v{lo}, s{sel}')

            perms(0)
            for j in range(8):
                if j < 7:
                    perms(j + 1)
                else:
                    A('s_nop 1')
                A(f'v_mfma_f32_16x16x32_bf16 {vr(vO + 4*j)}, {vr(P)}, {vr(vB + 4*(j % 3))}, {vr(vO + 4*j)}')
            if vf:
                for i in range(8):
                    self.v_load(buf, half, i)
        if vf:
            A(f's_add_u32 s{sVO}, s{sVO}, 16384')
        elif refill:
            self.v_issue(buf)

    def stream_init(self):
        A = self.A
        A(f'v_mov_b32 v{vM}, 0xff7fffff')
        A(f'v_mov_b32 v{vL}, 0')
        A(f'v_and_b32 v{vT}, 2, v{vC}')
        A(f'v_cmp_eq_u32 vcc, 0, v{vT}')
        self.masks()
        A(f'v_cndmask_b32 v{vMA}, 0, -1, vcc')
        A(f'v_not_b32 v{vMB}, v{vMA}')
        for j in range(32):
            A(f'v_mov_b32 v{vO+j}, 0')

    def q_frags(self):
        A = self.A
        A(f'v_and_b32 v{vT}, 1, v{vC}')
        A(f'v_lshlrev_b32 v{vT}, 9, v{vT}')
        A(f'v_lshl_add_u32 v{vT}, v{vG_}, 4, v{vT}')
        for s in range(8):
            A(f'ds_read_b128 {ar(aQ + 4*s)}, v{vT} offset:{L_Q + 64*s}')
        A('s_waitcnt lgkmcnt(0)')

    def startup_loads(self, second_step, bar=False):
        A = self.A
        sd = self.sd
        self.k_issue(0)
        if sd < 32:
            A(f's_waitcnt vmcnt({sd - 16})')
        self.v_issue(0)
        if bar:
            A('s_barrier')
        if sd < 48:
            A(f's_waitcnt vmcnt({sd - 16})')
        self.stamp(4)
        self.k_issue(1, second_step)
        if sd < 64:
            A(f's_waitcnt vmcnt({sd - 16})')
        self.v_issue(1, second_step)

    def wo_frags(self):
        A = self.A
        R = vV[0]
        A(f's_and_b32 s{sU+6}, s2, 31')
        A(f's_mul_i32 s{sU+6}, s{sU+6}, {128*896}')
        A(f's_lshr_b32 s{sU+1}, s2, 5')
        A(f's_lshl_b32 s{sU+1}, s{sU+1}, 7')
        A(f's_add_u32 s{sU+6}, s{sU+6}, s{sU+1}')
        A(f'v_mul_u32_u24 v{vT+8}, 7168, v{vG_}')
        A(f'v_lshl_add_u32 v{vT+8}, v{vC}, 3, v{vT+8}')
        for ks in range(4):
            for i in range(8):
                if (i & 3) == 0:
                    A(f's_add_u32 s{sU+1}, s{sU+6}, {ks*32*896 + (i >> 2)*3584}')
                A(f'buffer_load_dwordx2 {vr(R + ks*16 + 2*i, 2)}, v{vT+8}, {srd(sWO)}, s{sU+1} offen offset:{(i & 3)*896} nt')
        for ks in range(4):
            A(f's_waitcnt vmcnt({24 - 8*ks})')
            for t in range(2):
                for u in range(4):
                    lo = R + ks*16 + 2*(2*u) + t
                    hi = R + ks*16 + 2*(2*u+1) + t
                    A(f'v_perm_b32 v{vS + (2*t)*4 + u}, v{hi}, v{lo}, s{sSLO}')
                    A(f'v_perm_b32 v{vS + (2*t+1)*4 + u}, v{hi}, v{lo}, s{sSHI}')
            for q in range(16):
                A(f'v_accvgpr_write_b32 a{ks*16 + q}, v{vS + q}')

    def gather(self, b0, n):
        A = self.A
        D = vV[0]
        ML = vO
        ns = 4 * n
        ALL = (1 << ns) - 1
        sD, sM, sDone, sGot, sRdy, sNeed = sU + 2, sU + 3, sU + 4, sKO, sVO, sT0
        sW = 96
        sRnd, sD2 = 12, 13
        sW2 = 4
        A(f's_and_b32 s{sU}, s2, 28')
        A(f's_add_u32 s{sU}, s{sU}, {b0*32}')
        A(f's_and_b32 s{sU+1}, s2, 3')
        A(f's_lshl_b32 s{sD}, s{sU}, 12')
        A(f's_and_b32 s{sU+6}, s{sU+1}, 1')
        A(f's_lshl_b32 s{sU+6}, s{sU+6}, 9')
        A(f's_add_u32 s{sD}, s{sD}, s{sU+6}')
        A(f's_lshr_b32 s{sU+6}, s{sU+1}, 1')
        A(f's_lshl_b32 s{sU+6}, s{sU+6}, 8')
        A(f's_add_u32 s{sD}, s{sD}, s{sU+6}')
        A(f's_add_u32 s{sD}, s{sD}, {WS_P}')
        A(f's_lshl_b32 s{sM}, s{sU}, 7')
        A(f's_lshr_b32 s{sU+1}, s{sU+1}, 1')
        A(f's_lshl_b32 s{sU+1}, s{sU+1}, 4')
        A(f's_add_u32 s{sM}, s{sM}, s{sU+1}')
        A(f's_add_u32 s{sM}, s{sM}, {WS_ML}')
        A(f'v_lshlrev_b32 v{vT+7}, 10, v{vG_}')
        A(f'v_lshl_add_u32 v{vT+7}, v{vC}, 4, v{vT+7}')
        A(f'v_min_u32 v{vT+8}, {ns-1}, v{vC}')
        A(f'v_lshrrev_b32 v{vT+6}, 2, v{vT+8}')
        A(f'v_lshlrev_b32 v{vT+6}, 12, v{vT+6}')
        A(f'v_and_b32 v{vT+8}, 3, v{vT+8}')
        A(f'v_lshl_add_u32 v{vT+8}, v{vT+8}, 7, v{vT+6}')
        A(f'v_lshlrev_b32 v{vT+6}, 4, v{vC}')
        A(f'v_lshl_add_u32 v{vT+6}, v{vG_}, 2, v{vT+6}')
        A(f's_not_b32 s{sU+1}, s{sTAG}')
        for src in range(ns):
            A(f'v_mov_b32 v{D + 4*src + 1}, s{sU+1}')
        A(f'v_mov_b32 v{ML}, 0')
        A(f'v_mov_b32 v{ML+1}, s{sU+1}')
        A(f'v_mov_b32 v{ML+2}, 1.0')
        A(f'v_mov_b32 v{ML+3}, s{sU+1}')
        A(f's_mov_b32 s{sDone}, 0')
        A(f's_mov_b32 s{sGot}, 0')
        A(f's_mov_b32 s{sRdy}, 0')
        if self.pollstart:
            self.wait_flag(4)
        top = self.lab('G')
        if self.ts and b0 < 6:
            self.stamp(3)
            A(f's_mov_b32 s{sCNT}, 0')
        self.L(top)
        if self.ts and b0 < 6:
            A(f's_add_u32 s{sCNT}, s{sCNT}, 1')
            A(f's_mov_b32 s{sTS+8}, s{sCNT}')
            A(f's_mov_b32 s{sTS+9}, 0')
        A(f's_andn2_b32 s{sU+1}, {ALL}, s{sRdy}')
        A(f's_mov_b32 exec_lo, s{sU+1}')
        A('s_mov_b32 exec_hi, 0')
        A(f'buffer_load_dwordx4 {vr(ML)}, v{vT+8}, {srd(sWS)}, s{sM} offen sc1')
        A('s_mov_b64 exec, -1')
        A(f's_bcnt1_i32_b32 s{sU+1}, s{sU+1}')
        A(f's_cmp_le_u32 s{sU+1}, {self.spec}')
        A(f's_cselect_b32 s{sNeed}, {ALL}, s{sRdy}')
        A(f's_andn2_b32 s{sNeed}, s{sNeed}, s{sGot}')
        for k in range(n):
            sk = self.lab('GS')
            A(f's_bfe_u32 s{sU+1}, s{sNeed}, {(4 << 16) | (4*k)}')
            A(f's_cbranch_scc0 {sk}')
            for sp in range(4):
                src = 4*k + sp
                A(f's_bitcmp1_b32 s{sNeed}, {src}')
                A('s_cselect_b64 exec, -1, 0')
                A(f's_add_u32 s{sU+1}, s{sD}, {k*32*4096 + sp*4096}')
                A(f'buffer_load_dwordx4 {vr(D + 4*src)}, v{vT+7}, {srd(sWS)}, s{sU+1} offen sc1')
            A('s_mov_b64 exec, -1')
            self.L(sk)
        A('s_waitcnt vmcnt(0)')
        A(f'v_xor_b32 v{vT+2}, s{sTAG}, v{ML+1}')
        A(f'v_xor_b32 v{vT+3}, s{sTAG}, v{ML+3}')
        A(f'v_or_b32 v{vT+2}, v{vT+2}, v{vT+3}')
        A(f'v_cmp_eq_u32 vcc, 0, v{vT+2}')
        A(f'v_max_f32_dpp v{vT+2}, v{ML}, v{ML} quad_perm:[1,0,3,2] row_mask:0xf bank_mask:0xf')
        A(f's_and_b32 s{sRdy}, vcc_lo, {ALL}')
        A('s_nop 0')
        A(f'v_max_f32_dpp v{vT+2}, v{vT+2}, v{vT+2} quad_perm:[2,3,0,1] row_mask:0xf bank_mask:0xf')
        A(f'v_sub_f32 v{vT+2}, v{ML}, v{vT+2}')
        A(f'v_exp_f32 v{vT+2}, v{vT+2}')
        A('s_nop 0')
        A(f'v_mul_f32 v{vT+3}, v{vT+2}, v{ML+2}')
        A('s_nop 1')
        A(f'v_add_f32_dpp v{vT+3}, v{vT+3}, v{vT+3} quad_perm:[1,0,3,2] row_mask:0xf bank_mask:0xf')
        A('s_nop 1')
        A(f'v_add_f32_dpp v{vT+3}, v{vT+3}, v{vT+3} quad_perm:[2,3,0,1] row_mask:0xf bank_mask:0xf')
        A(f'v_rcp_f32 v{vT+3}, v{vT+3}')
        A('s_nop 0')
        A(f'v_mul_f32 v{vT+5}, v{vT+2}, v{vT+3}')
        for k in range(n):
            sk = self.lab('GB')
            d = D + 16*k
            A(f's_bitcmp1_b32 s{sDone}, {k}')
            A(f's_cbranch_scc1 {sk}')
            for sp in range(4):
                A(f'v_xor_b32 v{vB+2*sp}, s{sTAG}, v{d+4*sp+1}')
                A(f'v_xor_b32 v{vB+2*sp+1}, s{sTAG}, v{d+4*sp+3}')
            for sp in range(4):
                A(f'v_or_b32 v{vB+2*sp}, v{vB+2*sp}, v{vB+2*sp+1}')
            for sp in range(4):
                A(f'v_cmp_ne_u32 s[{sW2+2*sp}:{sW2+2*sp+1}], 0, v{vB+2*sp}')
            for sp in range(4):
                A(f'v_readlane_b32 s{sW+sp}, v{vT+5}, {4*k + sp}')
            for sp in range(4):
                A(f's_cmp_eq_u64 s[{sW2+2*sp}:{sW2+2*sp+1}], 0')
                A(f's_cselect_b32 s{sU+1}, {1 << (4*k + sp)}, 0')
                A(f's_or_b32 s{sGot}, s{sGot}, s{sU+1}')
            A(f'v_mul_f32 v{vT+3}, s{sW}, v{d}')
            A(f'v_mul_f32 v{vT+4}, s{sW}, v{d+2}')
            A(f's_and_b32 s{sU+1}, s{sGot}, s{sRdy}')
            A(f's_bfe_u32 s{sU+1}, s{sU+1}, {(4 << 16) | (4*k)}')
            A(f's_cmp_lg_u32 s{sU+1}, 15')
            A(f's_cbranch_scc1 {sk}')
            for sp in range(1, 4):
                A(f'v_fmac_f32 v{vT+3}, s{sW+sp}, v{d+4*sp}')
                A(f'v_fmac_f32 v{vT+4}, s{sW+sp}, v{d+4*sp+2}')
            A(f'v_cvt_pk_bf16_f32 v{vT+3}, v{vT+3}, v{vT+4}')
            A(f'ds_write_b32 v{vT+6}, v{vT+3} offset:{L_o + (b0 + k)*272}')
            A(f's_bitset1_b32 s{sDone}, {k}')
            self.L(sk)
        A(f's_sub_u32 s{sTO}, s{sTO}, 1')
        A(f's_cmp_eq_u32 s{sTO}, 0')
        A('s_cbranch_scc1 M_end')
        A(f's_cmp_lg_u32 s{sDone}, {(1 << n) - 1}')
        A(f's_cbranch_scc1 {top}')

    def gemv_prep(self):
        A = self.A
        self.masks()
        A(f'v_and_b32 v{vAL}, 7, v{vC}')
        A(f'v_mul_u32_u24 v{vAL}, 272, v{vAL}')
        A(f'v_lshl_add_u32 v{vAL}, v{vG_}, 4, v{vAL}')
        A(f'v_lshlrev_b32 v{vAL+1}, 4, v{vLANE}')
        A(f's_lshl_b32 s{sU+7}, s2, 12')
        A(f's_add_u32 s{sU+7}, s{sU+7}, {WS_Y}')
        for q in range(8):
            A(f'v_mov_b32 v{vV[1] + 2*q + 1}, s{sTAG}')

    def gemv(self):
        A = self.A
        AF = vO
        Y = vO + 16
        P = vV[1]
        for ks in range(4):
            A(f'ds_read_b128 {vr(AF + 4*ks)}, v{vAL} offset:{L_o + 64*ks}')
        for ks in range(4):
            A(f's_waitcnt lgkmcnt({3-ks})')
            for jj in range(4):
                y = Y + 4*jj
                c = '0' if ks == 0 else vr(y)
                A(f'v_mfma_f32_16x16x32_bf16 {vr(y)}, {vr(AF + 4*ks)}, {ar(ks*16 + jj*4)}, {c}')
        A('s_nop 4')
        for jj in range(4):
            for rr in range(2):
                A(f'v_cndmask_b32 v{P + rr*8 + 2*jj}, v{Y + 4*jj + rr}, v{Y + 4*jj + 2 + rr}, s[{sMG2}:{sMG2+1}]')
            if jj & 1:
                for rr in range(2):
                    A(f'buffer_store_dwordx4 {vr(P + rr*8 + 2*(jj-1))}, v{vAL+1}, {srd(sWS)}, s{sU+7} offen offset:{(rr*2 + (jj >> 1))*1024} sc1')

    SO = (sOWN, sISS, sTK, sCNT, 12, 13, 14, 15)

    def reduce_prep(self):
        A = self.A
        R = vPUB
        SO = self.SO
        A(f's_lshr_b32 s{sU+1}, s2, 5')
        A(f's_lshl_b32 s{sGB}, s{sU+1}, 7')
        A(f's_lshl_b32 s{SO[0]}, s{sU+1}, 17')
        A(f's_and_b32 s{sU+1}, s2, 31')
        A(f's_lshl_b32 s{sU+6}, s{sU+1}, 7')
        A(f's_add_u32 s{SO[0]}, s{SO[0]}, s{sU+6}')
        A(f's_add_u32 s{SO[0]}, s{SO[0]}, {WS_Y}')
        for n in range(1, 8):
            A(f's_add_u32 s{SO[n]}, s{SO[0]}, {n*16384}')
        A(f'v_lshlrev_b32 v{R}, 12, v{vG_}')
        A(f'v_lshl_add_u32 v{R}, v{vC}, 3, v{R}')
        for bit, mul in ((4, 896), (3, 4), (2, 2*896), (1, 4*896), (0, 64)):
            A(f's_bitcmp1_b32 s{sU+1}, {bit}')
            A(f's_cselect_b32 s{sU+6}, {mul}, 0')
            A(f's_add_u32 s{sGB}, s{sGB}, s{sU+6}')
        A(f'v_lshrrev_b32 v{R+1}, 1, v{vC}')
        A(f'v_lshlrev_b32 v{R+1}, 3, v{R+1}')
        A(f'v_and_b32 v{R+2}, 1, v{vC}')
        A(f'v_lshl_add_u32 v{R+1}, v{R+2}, 1, v{R+1}')
        A(f's_load_dword s{sG}, s[18:19], {WS_G}')
        A('s_waitcnt lgkmcnt(0)')

    def reduce(self):
        A = self.A
        R = vPUB
        E = vV[0]
        ns = self.nset

        if self.r2:
            sDn, sC = sKO, 4
            A(f's_not_b32 s{sU+1}, s{sTAG}')
            for n in range(8):
                A(f'v_mov_b32 v{E + 2*n + 1}, s{sU+1}')
            A(f's_mov_b32 s{sDn}, 0')
            self.L('M_p2')
            for n in range(8):
                so = self.SO[n]
                A(f's_bitcmp0_b32 s{sDn}, {n}')
                A('s_cselect_b64 exec, -1, 0')
                A(f'buffer_load_dwordx2 {vr(E + 2*n, 2)}, v{R}, {srd(sWS)}, s{so} offen sc1')
            A('s_mov_b64 exec, -1')
            A(f's_sub_u32 s{sTO}, s{sTO}, 1')
            A(f's_cmp_eq_u32 s{sTO}, 0')
            A('s_cbranch_scc1 M_end')
            A('s_waitcnt vmcnt(0)')
            for q in range(8):
                A(f'v_xor_b32 v{vB + q}, s{sTAG}, v{E + 2*q + 1}')
            A(f'v_or3_b32 v{vT+2}, v{vB}, v{vB+1}, v{vB+2}')
            A(f'v_or3_b32 v{vT+3}, v{vB+3}, v{vB+4}, v{vB+5}')
            A(f'v_or3_b32 v{vT+2}, v{vT+2}, v{vB+6}, v{vB+7}')
            A(f'v_or_b32 v{vT+2}, v{vT+2}, v{vT+3}')
            A(f'v_cmp_ne_u32 vcc, 0, v{vT+2}')
            A(f'v_add_f32 v{vS}, v{E}, v{E+2}')
            A(f'v_add_f32 v{vS+1}, v{E+4}, v{E+6}')
            A(f'v_add_f32 v{vS+2}, v{E+8}, v{E+10}')
            A(f'v_add_f32 v{vS+3}, v{E+12}, v{E+14}')
            A(f'v_add_f32 v{vS}, v{vS}, v{vS+1}')
            A(f'v_add_f32 v{vS+2}, v{vS+2}, v{vS+3}')
            A(f'v_add_f32 v{vT+4}, v{vS}, v{vS+2}')
            A('s_cbranch_vccz M_p2ok')
            for h in range(2):
                for q in range(4):
                    A(f'v_cmp_ne_u32 s[{sC+2*q}:{sC+2*q+1}], 0, v{vB + 4*h + q}')
                A('s_nop 0')
                for q in range(4):
                    A(f's_cmp_eq_u64 s[{sC+2*q}:{sC+2*q+1}], 0')
                    A(f's_cselect_b32 s{sU+1}, {1 << (4*h + q)}, 0')
                    A(f's_or_b32 s{sDn}, s{sDn}, s{sU+1}')
            A('s_branch M_p2')
        else:
            def issue(i):
                for n in range(8):
                    so = self.SO[n]
                    A(f'buffer_load_dwordx2 {vr(E + 16*i + 2*n, 2)}, v{R}, {srd(sWS)}, s{so} offen sc1')
            for i in range(ns):
                issue(i)
                if i < ns - 1:
                    A(f's_sleep {self.stag}')
            self.L('M_p2')
            for i in range(ns):
                e = E + 16*i
                A(f's_waitcnt vmcnt({8*(ns-1)})')
                for q in range(8):
                    A(f'v_xor_b32 v{e + 2*q + 1}, s{sTAG}, v{e + 2*q + 1}')
                A(f'v_or3_b32 v{vT+2}, v{e+1}, v{e+3}, v{e+5}')
                A(f'v_or3_b32 v{vT+3}, v{e+7}, v{e+9}, v{e+11}')
                A(f'v_or3_b32 v{vT+2}, v{vT+2}, v{e+13}, v{e+15}')
                A(f'v_or_b32 v{vT+2}, v{vT+2}, v{vT+3}')
                A(f'v_cmp_ne_u32 vcc, 0, v{vT+2}')
                for st in (1, 2, 4):
                    for q in range(0, 8, 2*st):
                        dst = vT + 4 if st == 4 else e + 2*q
                        A(f'v_add_f32 v{dst}, v{e + 2*q}, v{e + 2*(q+st)}')
                A('s_cbranch_vccz M_p2ok')
                issue(i)
            A(f's_sub_u32 s{sTO}, s{sTO}, 1')
            A(f's_cmp_lg_u32 s{sTO}, 0')
            A('s_cbranch_scc1 M_p2')
            A('s_branch M_end')
        self.L('M_p2ok')
        self.xlane(vT + 4, vT + 5, 'v_add_f32')
        A(f'v_cvt_pk_bf16_f32 v{vT+2}, v{vT+4}, v{vT+4}')
        A('s_mov_b64 exec, 0xffff')
        A(f'buffer_store_short v{vT+2}, v{R+1}, {srd(sOUT)}, s{sGB} offen')
        A('s_mov_b64 exec, 1')
        A('s_cmp_lg_u32 s2, 0')
        A('s_cbranch_scc1 M_nogen')
        A(f'v_mov_b32 v{vT+7}, 0')
        A(f's_add_u32 s{sG}, s{sG}, 1')
        A(f'v_mov_b32 v{vT+8}, s{sG}')
        A(f'buffer_store_dword v{vT+8}, v{vT+7}, {srd(sWS)}, 0 offen offset:{WS_G} sc1')
        self.L('M_nogen')
        A('s_mov_b64 exec, -1')

    def main(self):
        A = self.A
        self.o += ['.globl ' + NAME, '.p2align 8', f'.type {NAME},@function', NAME + ':']
        self.stamp(0)
        if self.ts:
            A('s_memtime s[92:93]')
            for i in range(1, 6):
                A(f's_mov_b64 s[{sTS+2*i}:{sTS+2*i+1}], 0')
        self.prologue()
        A('s_cmp_eq_u32 s3, 2')
        A('s_cbranch_scc1 M_w2')
        if self.bar0 == 2:
            A('s_cmp_eq_u32 s3, 0')
            A('s_cbranch_scc1 M_w0')
        A('s_barrier')
        A('s_cmp_eq_u32 s3, 1')
        A('s_cbranch_scc1 M_w1')
        A('s_cmp_eq_u32 s3, 3')
        A('s_cbranch_scc1 M_w3')

        self.L('M_w0')
        self.startup_loads(16384 * 3, self.bar0 == 2)
        self.stream_init()
        A(f's_waitcnt vmcnt({max(self.sd - 16, 0)})')
        self.set_flag(2)
        self.stamp(3)
        if not self.noq:
            self.wait_flag(0, True)
        self.stamp(1)
        self.q_frags()
        S = self.S
        P = (64 - S) * 4
        PUB = vPUB
        for q in range(10):
            A(f'v_mov_b32 v{PUB + 2*q + 1}, s{sTAG}')
        A(f'v_lshlrev_b32 v{vT+8}, 4, v{vLANE}')
        A(f's_mov_b32 s{sOWN}, s{sKO}')
        A(f's_mov_b32 s{sISS}, 4')
        A(f's_lshr_b32 s{sU}, s2, 2')
        A(f's_lshl_b32 s{sGB}, s{sU}, 22')
        A(f's_add_u32 s{sGB}, s{sGB}, {S * 16384}')
        A(f's_lshl_b32 s{sU}, s{sU}, 8')
        A(f's_add_u32 s{sU}, s{sU}, {WS_C}')
        A(f's_add_u32 s{sCB}, s18, s{sU}')
        A(f's_addc_u32 s{sCB+1}, s19, 0')
        A(f's_mov_b32 s{sTK}, {P}')

        def ticket():
            if P:
                A(f's_mov_b32 s{sTK}, 1')
                A(f's_atomic_add s{sTK}, s[{sCB}:{sCB+1}], 0 glc')

        def next_tile(buf):
            st, jn = self.lab('NS'), self.lab('NJ')
            A(f's_cmp_lt_u32 s{sISS}, {S}')
            A(f's_cbranch_scc1 {st}')
            A('s_waitcnt lgkmcnt(0)')
            A(f's_cmp_ge_u32 s{sTK}, {P}')
            A(f's_cbranch_scc1 M_drain{buf}')
            A(f's_and_b32 s{sU}, s{sTK}, 3')
            A(f's_lshl_b32 s{sU}, s{sU}, 20')
            A(f's_lshr_b32 s{sU+1}, s{sTK}, 2')
            A(f's_lshl_b32 s{sU+1}, s{sU+1}, 14')
            A(f's_add_u32 s{sKO}, s{sGB}, s{sU}')
            A(f's_add_u32 s{sKO}, s{sKO}, s{sU+1}')
            ticket()
            A(f's_branch {jn}')
            self.L(st)
            A(f's_mov_b32 s{sKO}, s{sOWN}')
            A(f's_add_u32 s{sOWN}, s{sOWN}, 16384')
            A(f's_add_u32 s{sISS}, s{sISS}, 1')
            if buf == 0:
                A(f's_cmp_eq_u32 s{sISS}, 41')
                A('s_cbranch_scc1 M_merge')
                self.L('M_merged')
            A(f's_cmp_lg_u32 s{sISS}, {S}')
            A(f's_cbranch_scc1 {jn}')
            ticket()
            self.L(jn)
            A(f's_mov_b32 s{sVO}, s{sKO}')

        self.L('M_loop')
        next_tile(0)
        self.tile(0, True, 48, 48)
        next_tile(1)
        self.tile(1, True, 48, 48)
        A('s_branch M_loop')

        self.L('M_merge')
        self.wait_flag(7)
        A(f's_mov_b32 s{sSAME}, s{sU+9}')
        self.wait_flag(3)
        A(f'v_lshlrev_b32 v{vT+4}, 4, v{vLANE}')
        A(f'ds_read_b128 {vr(vB)}, v{vT+4} offset:{L_H + 8*1024}')
        A('s_waitcnt lgkmcnt(0)')
        A(f'v_max_f32 v{vT}, v{vM}, v{vB}')
        A(f'v_sub_f32 v{vT+1}, v{vM}, v{vT}')
        A(f'v_sub_f32 v{vT+2}, v{vB}, v{vT}')
        A(f'v_exp_f32 v{vT+1}, v{vT+1}')
        A(f'v_exp_f32 v{vT+2}, v{vT+2}')
        A(f'v_mov_b32 v{vM}, v{vT}')
        A('s_nop 0')
        A(f'v_mul_f32 v{vL}, v{vL}, v{vT+1}')
        A(f'v_fmac_f32 v{vL}, v{vB+1}, v{vT+2}')
        A(f'v_mov_b32_dpp v{vAL}, v{vT+1} quad_perm:[0,0,2,2] row_mask:0xf bank_mask:0xf')
        A(f'v_mov_b32_dpp v{vAL+1}, v{vT+1} quad_perm:[1,1,3,3] row_mask:0xf bank_mask:0xf')
        A(f'v_mov_b32_dpp v{vT+5}, v{vT+2} quad_perm:[0,0,2,2] row_mask:0xf bank_mask:0xf')
        A(f'v_mov_b32_dpp v{vT+6}, v{vT+2} quad_perm:[1,1,3,3] row_mask:0xf bank_mask:0xf')
        for half in range(2):
            for j in range(4):
                A(f'ds_read_b128 {vr(vS + 4*j)}, v{vT+4} offset:{L_H + (half*4 + j)*1024}')
            for j in range(8):
                A(f'v_pk_mul_f32 {vr(vO + half*16 + 2*j, 2)}, {vr(vO + half*16 + 2*j, 2)}, {vr(vAL, 2)}')
            A('s_waitcnt lgkmcnt(0)')
            for j in range(8):
                A(f'v_pk_fma_f32 {vr(vO + half*16 + 2*j, 2)}, {vr(vS + 2*j, 2)}, {vr(vT+5, 2)}, {vr(vO + half*16 + 2*j, 2)}')
        A('s_branch M_merged')

        for first in (1, 0):
            self.L(f'M_drain{first}')
            if not self.notail:
                A('s_barrier')
            A(f's_lshl_b32 s{sU}, s2, 12')
            A(f's_add_u32 s{sU}, s{sU}, {WS_P}')
            A(f's_lshl_b32 s{sU+2}, s2, 7')
            A(f's_add_u32 s{sU+2}, s{sU+2}, {WS_ML}')
            self.tile(first, False, 48, 32)
            self.tile(1 - first, False, 16, 0)
            if first == 1:
                A('s_branch M_pub')
        self.L('M_pub')
        self.stamp(2)
        if self.notail:
            A('s_branch M_fin')
        self.xlane(vL, vT, 'v_add_f32')
        A(f'v_mov_b32 v{PUB+16}, v{vM}')
        A(f'v_mov_b32 v{PUB+18}, v{vL}')
        A(f's_cmp_eq_u32 s{sSAME}, 2')
        A('s_cbranch_scc0 M_pubx')
        for pol in ('', ' sc1'):
            if pol:
                self.L('M_pubx')
            for j in range(8):
                A(f'v_cndmask_b32 v{vT+1}, v{vO+4*j}, v{vO+4*j+1}, s[{sMG1}:{sMG1+1}]')
                A(f'v_cndmask_b32 v{vT+2}, v{vO+4*j+2}, v{vO+4*j+3}, s[{sMG1}:{sMG1+1}]')
                A(f'v_cndmask_b32 v{PUB+2*j}, v{vT+1}, v{vT+2}, s[{sMG2}:{sMG2+1}]')
                if j & 1:
                    A(f'buffer_store_dwordx4 {vr(PUB + 2*(j-1))}, v{vT+8}, {srd(sWS)}, s{sU} offen offset:{1024*(j >> 1)}{pol}')
            A('s_mov_b64 exec, 3')
            A(f'buffer_store_dwordx4 {vr(PUB+16)}, v{vT+8}, {srd(sWS)}, s{sU+2} offen{pol}')
            A('s_mov_b64 exec, -1')
            if not pol:
                A('s_branch M_pubd')
        self.L('M_pubd')
        self.set_flag(4)
        self.stamp(3)
        A('s_branch M_fin')

        self.L('M_w1')
        self.stream_init()
        self.wait_flag(2)
        self.startup_loads(16384)
        if not self.noq:
            self.wait_flag(0, True)
        self.stamp(1)
        self.q_frags()
        self.tile(0, False, 48, 32)
        self.tile(1, False, 16, 0)
        A(f'v_lshlrev_b32 v{vT+4}, 4, v{vLANE}')
        A(f'v_mov_b32 v{vB}, v{vM}')
        A(f'v_mov_b32 v{vB+1}, v{vL}')
        A('s_nop 5')
        for j in range(8):
            A(f'ds_write_b128 v{vT+4}, {vr(vO + 4*j)} offset:{L_H + j*1024}')
        A(f'ds_write_b128 v{vT+4}, {vr(vB)} offset:{L_H + 8*1024}')
        self.set_flag(3)
        self.stamp(2)
        if self.notail:
            A('s_branch M_fin')
        if self.noq:
            self.wait_flag(0, True)
        A('s_cmp_ge_u32 s2, 224')
        A('s_cbranch_scc1 M_fin')
        A('s_barrier')
        if self.nogather:
            A('s_branch M_fin')
        self.gather(0, 4 if self.g44 else 3)
        self.set_flag(5)
        A('s_branch M_fin')

        self.L('M_w3')
        if self.notail:
            A('s_branch M_fin')
        A('s_cmp_ge_u32 s2, 224')
        A('s_cbranch_scc1 M_fin')
        if not self.wolate and not self.womid:
            self.wo_frags()
        self.wait_flag(0, True)
        if not self.wolate and self.womid:
            self.wait_flag(3)
            self.wo_frags()
        if not self.wolate:
            self.gemv_prep()
            self.reduce_prep()
        A('s_barrier')
        if self.wolate and not self.nowo:
            self.wo_frags()
        if self.nogather:
            A('s_branch M_fin')
        if self.wolate:
            self.gemv_prep()
            self.reduce_prep()
        self.stamp(3)
        if not self.g44:
            self.gather(6, 2)
        self.wait_flag(5, word2=6)
        self.stamp(4)
        self.gemv()
        self.stamp(2)
        self.reduce()
        A('s_branch M_fin')

        self.L('M_w2')
        if self.noprod:
            A('s_barrier')
            A('s_branch M_fin')
        A('s_setprio 3')
        A(f's_load_dword s{sG}, s[18:19], {WS_G}')
        if self.bar0 != 1:
            A('s_barrier')
        A(f's_and_b32 s{sU}, s2, 3')
        A(f's_cmp_lg_u32 s{sU}, 0')
        A('s_cbranch_scc1 M_noprod1')
        self.q_issue()
        self.L('M_noprod1')
        if self.bar0 == 1:
            A('s_barrier')
        self.q_tag()
        A(f's_getreg_b32 s{sSAME}, hwreg(HW_REG_XCC_ID, 0, 4)')
        A(f's_bfe_u32 s{sU+7}, s2, {(3 << 16) | 2}')
        A(f's_lshl_b32 s{sU+7}, s{sU+7}, 8')
        A(f's_add_u32 s{sU+7}, s{sU+7}, {WS_X}')
        A(f's_lshr_b32 s{sU+1}, s2, 5')
        A(f's_lshl_b32 s{sU+1}, s{sU+1}, 5')
        A(f's_and_b32 s{sU+2}, s2, 3')
        A(f's_lshl_b32 s{sU+2}, s{sU+2}, 3')
        A(f's_add_u32 s{sU+1}, s{sU+1}, s{sU+2}')
        A(f'v_mov_b32 v{vT+4}, s{sU+1}')
        A(f'v_mov_b32 v{vT+5}, s{sSAME}')
        A('s_mov_b64 exec, 1')
        A(f'buffer_store_dwordx2 {vr(vT+5, 2)}, v{vT+4}, {srd(sWS)}, s{sU+7} offen sc1')
        A('s_mov_b64 exec, -1')
        A(f's_and_b32 s{sU+1}, s2, 3')
        A(f's_cmp_lg_u32 s{sU+1}, 0')
        A('s_cbranch_scc1 M_noprod2')
        self.q_compute()
        self.L('M_noprod2')
        self.stamp(2)
        if self.nopoll:
            A('s_branch M_fin')
        self.q_gather()
        self.stamp(1)
        A('s_setprio 0')
        self.wait_flag(3)
        A(f'v_and_b32 v{vT}, 31, v{vLANE}')
        A(f'v_lshlrev_b32 v{vT}, 3, v{vT}')
        self.L('M_xpoll')
        A(f'buffer_load_dwordx2 {vr(vS, 2)}, v{vT}, {srd(sWS)}, s{sU+7} offen sc1')
        A('s_waitcnt vmcnt(0)')
        A(f'v_cmp_ne_u32 s[{sMG1}:{sMG1+1}], s{sSAME}, v{vS}')
        A(f'v_cmp_ne_u32 vcc, s{sTAG}, v{vS+1}')
        self.poll_tail('M_xpoll')
        A(f's_cmp_eq_u64 s[{sMG1}:{sMG1+1}], 0')
        A(f's_cselect_b32 s{sU+1}, {2 if self.l2 else 1}, 1')
        A(f'v_mov_b32 v{vT+1}, {L_FL + 28}')
        A(f'v_mov_b32 v{vT+2}, s{sU+1}')
        A(f'ds_write_b32 v{vT+1}, v{vT+2}')
        if self.notail:
            A('s_branch M_fin')
        A('s_cmp_ge_u32 s2, 224')
        A('s_cbranch_scc1 M_fin')
        A('s_barrier')
        if self.nogather:
            A('s_branch M_fin')
        self.gather(*((4, 4) if self.g44 else (3, 3)))
        self.set_flag(6)

        self.L('M_fin')
        if self.ts:
            self.stamp(5)
            A('s_memtime s[94:95]')
            A('s_waitcnt lgkmcnt(0)')
            A(f's_lshl_b32 s{sU}, s2, 3')
            A(f's_add_u32 s{sU}, s{sU}, s3')
            A(f's_lshl_b32 s{sU}, s{sU}, 6')
            A(f's_add_u32 s{sU}, s{sU}, {WS_T}')
            A(f'v_mov_b32 v{vT}, 0')
            A('s_mov_b64 exec, 1')
            for i in range(8):
                A(f'v_mov_b32 v{vB}, s{sTS + 2*i}')
                A(f'v_mov_b32 v{vB+1}, s{sTS + 2*i + 1}')
                A(f'buffer_store_dwordx2 {vr(vB, 2)}, v{vT}, {srd(sWS)}, s{sU} offen offset:{8*i}')
                A('s_nop 1')
        self.L('M_end')
        A('s_endpgm')

    def build(self):
        self.o = ['; GQA decode attention block (q-proj + flash-decoding + out-proj) in one launch; generated by bench/gen14.py',
                  f'; @launch grid=(256,1,1) block=(256,1,1) lds={LDS_SIZE}',
                  '.amdgcn_target "amdgcn-amd-amdhsa--gfx950"', '.text']
        self.main()
        self.o += ['.section .rodata,"a"', '.p2align 6',
                   f'.amdhsa_kernel {NAME}',
                   f'  .amdhsa_next_free_vgpr {NV + NA}',
                   '  .amdhsa_next_free_sgpr 100',
                   f'  .amdhsa_accum_offset {NV}',
                   '  .amdhsa_group_segment_fixed_size 0',
                   '  .amdhsa_kernarg_size 64',
                   '  .amdhsa_user_sgpr_count 2',
                   '  .amdhsa_user_sgpr_kernarg_segment_ptr 1',
                   '  .amdhsa_system_sgpr_workgroup_id_x 1',
                   '  .amdhsa_float_denorm_mode_32 3',
                   '.end_amdhsa_kernel']
        return '\n'.join(self.o) + '\n'


if __name__ == '__main__':
    kw = {}
    for a in sys.argv[2:]:
        k, v = a.split('=')
        kw[k] = int(v) if v.isdigit() else v.replace('+', ' ')
    open(sys.argv[1], 'w').write(Gen(**kw).build())
```

```python
import re
import sys

NAME = 'standalone__gqa_block_cached__sampling_kernel'

WS_G = 0
WS_Q = 0x1000
WS_X = 0x2c000
WS_C = 0x30000
WS_P = 0x40000
WS_ML = 0x140000
WS_Y = 0x180000
WS_T = 0x280000
WS_B = 0x300000
WS_SIZE = 0x330000

L_WQ = 0x6a00
L_H = 0x3800
L_o = 0x5c00
L_FL = 0x6500
L_Q = 0x6600
LDS_SIZE = 0x14a00

sK, sV, sWS, sX, sWQ, sWO, sOUT = 20, 24, 28, 32, 36, 40, 44
sTAG, sG, sC1, sSLO, sSHI, sKO, sVO, sT0, sT1, sCNT, sTO = 52, 53, 54, 55, 56, 57, 58, 59, 60, 61, 62
sMG1, sMG2, sCB = 64, 66, 68
sOWN, sISS, sTK, sGB = 48, 49, 50, 51
sSAME = 63
sU = 70
sTS = 80

vLANE, vKOFF, vVOFF, vM, vL, vMA, vMB = 0, 1, 2, 3, 4, 5, 6
vT = 7
vS = 16
vPA, vPB = 24, 28
vB = 32
vAL = 44
vC, vG_ = 46, 47
vV = (48, 112)
vO = 176
vPUB = 208
NV = 228
aK = (0, 64)
aQ = 128
NA = 160


def srd(n):
    return f's[{n}:{n+3}]'


def vr(n, k=4):
    return f'v[{n}:{n+k-1}]'


def ar(n, k=4):
    return f'a[{n}:{n+k-1}]'


class Gen:
    def __init__(self, **kw):
        self.o = []
        self.uid = 0
        self.pend = []
        d = dict(ts=0, timeout=1 << 18, kf=1, vf=0, sd=32, notail=0, noq=0, nowo=0, wolate=1, nocomp=0, noprod=0,
                 bar0=1, nopoll=0, pollstart=1, psleep=0, nogather=0, p2wait=0, qdelay=0, kpol='nt', vpol='nt', S=61, nset=1, stag=6, spec=16, g44=0, womid=0, remap=1, bper=4, l2=1, r2=1, rs=1, dbgt=0)
        for k in kw:
            assert k in d, k
        d.update(kw)
        self.__dict__.update(d)

    def A(self, s):
        if s.startswith('buffer_'):
            m = re.search(r'offset:(\d+)', s)
            assert not m or int(m.group(1)) < 4096, s
        self.o.append('    ' + s)

    def hstore(self, data, voff, soff, imm=0):
        o = f' offset:{imm}' if imm else ''
        self.A(f'buffer_store_dwordx4 {data}, {voff}, {srd(sWS)}, s{soff} offen{o}')
        self.pend.append((data, voff, soff, imm))

    def hflush(self, tmp):
        last = None
        for data, voff, soff, imm in self.pend:
            if soff != last:
                self.A(f's_add_u32 s{tmp}, s{soff}, {WS_B}')
                last = soff
            o = f' offset:{imm}' if imm else ''
            self.A(f'buffer_store_dwordx4 {data}, {voff}, {srd(sWS)}, s{tmp} offen{o} sc1')
        self.pend = []

    def L(self, s):
        self.o.append(s + ':')

    def lab(self, p):
        self.uid += 1
        return f'{p}_{self.uid}'

    def stamp(self, i):
        if self.ts:
            n = sTS + 2 * i
            self.A(f's_memrealtime s[{n}:{n+1}]')

    def prologue(self):
        A = self.A
        A('s_cmp_ge_u32 s2, 256')
        A('s_cbranch_scc1 M_end')
        A('s_load_dwordx16 s[4:19], s[0:1], 0')
        if self.remap:
            A(f's_and_b32 s{sU}, s2, 7')
            A(f's_lshl_b32 s{sU}, s{sU}, 2')
            A(f's_bfe_u32 s{sU+1}, s2, {(2 << 16) | 3}')
            A(f's_and_b32 s2, s2, 0xe0')
            A(f's_or_b32 s2, s2, s{sU}')
            A(f's_or_b32 s2, s2, s{sU+1}')
            if self.remap == 2:
                A(f's_cmp_eq_u32 s2, 37')
                A(f's_cselect_b32 s{sU}, 41, s2')
                A(f's_cmp_eq_u32 s2, 41')
                A(f's_cselect_b32 s2, 37, s{sU}')
        A(f'v_lshrrev_b32 v{vT}, 6, v0')
        A(f'v_and_b32 v{vLANE}, 63, v0')
        A(f'v_readfirstlane_b32 s3, v{vT}')
        A(f'v_mov_b32 v{vT+1}, {L_FL}')
        A(f'v_mov_b32 v{vS}, 0')
        A(f'v_mov_b32 v{vS+1}, 0')
        A(f'v_mov_b32 v{vS+2}, 0')
        A(f'v_mov_b32 v{vS+3}, 0')
        A(f'ds_write_b128 v{vT+1}, {vr(vS)}')
        A(f'ds_write_b128 v{vT+1}, {vr(vS)} offset:16')
        A(f'v_and_b32 v{vC}, 15, v{vLANE}')
        A(f'v_lshrrev_b32 v{vG_}, 4, v{vLANE}')
        A(f'v_lshlrev_b32 v{vKOFF}, 9, v{vC}')
        A(f'v_lshl_add_u32 v{vKOFF}, v{vG_}, 4, v{vKOFF}')
        A(f'v_lshlrev_b32 v{vVOFF}, 11, v{vG_}')
        A(f'v_lshl_add_u32 v{vVOFF}, v{vC}, 4, v{vVOFF}')
        A(f's_lshl_b32 s{sKO}, s2, 20')
        A(f's_lshl_b32 s{sT0}, s3, 15')
        A(f's_add_u32 s{sKO}, s{sKO}, s{sT0}')
        A(f's_mov_b32 s{sVO}, s{sKO}')
        for n, size in ((sK, 0x10000000), (sV, 0x10000000), (sWS, WS_SIZE), (sX, 8 * 448 * 2), (sWQ, 448 * 4096 * 2),
                        (sWO, 4096 * 448 * 2), (sOUT, 8 * 448 * 2)):
            A(f's_mov_b32 s{n+2}, {size:#x}')
            A(f's_mov_b32 s{n+3}, 0x00020000')
        A(f's_mov_b32 s{sTO}, {self.timeout}')
        A(f's_mov_b32 s{sC1}, 0x3db8aa3b')
        A(f's_mov_b32 s{sSLO}, 0x05040100')
        A(f's_mov_b32 s{sSHI}, 0x07060302')
        A('s_waitcnt lgkmcnt(0)')
        for n, p in ((sX, 4), (sWQ, 10), (sK, 6), (sV, 8), (sWS, 18), (sWO, 12), (sOUT, 14)):
            A(f's_mov_b64 s[{n}:{n+1}], s[{p}:{p+1}]')

    def masks(self):
        A = self.A
        A(f'v_and_b32 v{vT+1}, 1, v{vG_}')
        A(f'v_and_b32 v{vT+2}, 2, v{vG_}')
        A(f'v_cmp_ne_u32 s[{sMG1}:{sMG1+1}], 0, v{vT+1}')
        A(f'v_cmp_ne_u32 s[{sMG2}:{sMG2+1}], 0, v{vT+2}')

    def wait_flag(self, word, also_tag=False, word2=None):
        A = self.A
        lw, ok = self.lab('W'), self.lab('K')
        A(f'v_mov_b32 v{vT+1}, {L_FL}')
        A(f's_mov_b32 s{sU+5}, {self.timeout * 8}')
        self.L(lw)
        A(f'ds_read_b128 {vr(vB)}, v{vT+1} offset:{(word >> 2) * 16}')
        A(f's_sub_u32 s{sU+5}, s{sU+5}, 1')
        A(f's_cmp_eq_u32 s{sU+5}, 0')
        A('s_cbranch_scc1 M_end')
        A('s_waitcnt lgkmcnt(0)')
        A(f'v_readfirstlane_b32 s{sU+9}, v{vB+(word & 3)}')
        if also_tag:
            A(f'v_readfirstlane_b32 s{sTAG}, v{vB+1}')
        elif word2 is not None:
            A(f'v_readfirstlane_b32 s{sU+1}, v{vB+(word2 & 3)}')
            A('s_nop 0')
            A(f's_and_b32 s{sU+9}, s{sU+9}, s{sU+1}')
        else:
            A('s_nop 0')
        A(f's_cmp_lg_u32 s{sU+9}, 0')
        A(f's_cbranch_scc1 {ok}')
        A('s_sleep 1')
        A(f's_branch {lw}')
        self.L(ok)

    def set_flag(self, word):
        A = self.A
        A(f'v_mov_b32 v{vT+1}, {L_FL + 4*word}')
        A(f'v_mov_b32 v{vT+2}, 1')
        A(f'ds_write_b32 v{vT+1}, v{vT+2}')

    QX, QB = 48, 112

    def q_issue(self):
        A = self.A
        A(f's_bfe_u32 s{sU}, s2, {(3 << 16) | 2}')
        A(f's_lshl_b32 s{sU}, s{sU}, 3')
        A(f's_lshr_b32 s{sU+2}, s2, 5')
        A(f's_add_u32 s{sU}, s{sU}, s{sU+2}')
        A(f's_lshr_b32 s{sU+1}, s2, 2')
        A(f's_lshl_b32 s{sU+1}, s{sU+1}, 8')
        A(f's_add_u32 s{sU+1}, s{sU+1}, {WS_C}')
        A(f'v_mov_b32 v{vT+2}, 0')
        A('s_mov_b64 exec, 1')
        A(f'buffer_store_dword v{vT+2}, v{vT+2}, {srd(sWS)}, s{sU+1} offen sc1')
        A('s_mov_b64 exec, -1')
        A(f's_lshl_b32 s{sU+1}, s{sU}, 7')
        A(f'v_lshrrev_b32 v{vT}, 3, v{vLANE}')
        A(f'v_lshlrev_b32 v{vT}, 13, v{vT}')
        A(f'v_and_b32 v{vT+1}, 7, v{vLANE}')
        A(f'v_lshl_add_u32 v{vT}, v{vT+1}, 4, v{vT}')
        A(f'v_and_b32 v{vT+1}, 7, v{vC}')
        A(f'v_mul_u32_u24 v{vT+1}, 896, v{vT+1}')
        A(f'v_lshl_add_u32 v{vT+1}, v{vG_}, 4, v{vT+1}')
        for kt in range(14):
            A(f'buffer_load_dwordx4 {vr(self.QX + 4*kt)}, v{vT+1}, {srd(sX)}, 0 offen offset:{64*kt}')
        for n in range(56):
            A(f's_mov_b32 m0, {L_WQ + n*1024}')
            A(f's_add_u32 s{sU+3}, s{sU+1}, {n*65536}')
            A(f'buffer_load_dwordx4 v{vT}, {srd(sWQ)}, s{sU+3} offen nt lds')

    def q_tag(self):
        A = self.A
        A(f's_lshr_b32 s{sU+4}, s2, 2')
        A(f's_lshl_b32 s{sU+4}, s{sU+4}, 11')
        A(f's_add_u32 s{sU+4}, s{sU+4}, {WS_Q}')
        A(f'v_lshlrev_b32 v{vT}, 4, v{vLANE}')
        A(f'v_lshlrev_b32 v{vT+7}, 7, v{vG_}')
        A(f'v_bfe_u32 v{vT+4}, v{vC}, 2, 1')
        A(f'v_lshl_add_u32 v{vT+7}, v{vT+4}, 6, v{vT+7}')
        A(f'v_lshrrev_b32 v{vT+4}, 3, v{vC}')
        A(f'v_lshl_add_u32 v{vT+7}, v{vT+4}, 5, v{vT+7}')
        A(f'v_and_b32 v{vT+4}, 3, v{vC}')
        A(f'v_lshl_add_u32 v{vT+7}, v{vT+4}, 3, v{vT+7}')
        A(f'v_add_u32 v{vT+7}, {L_Q}, v{vT+7}')
        A('s_waitcnt lgkmcnt(0)')
        A(f's_add_u32 s{sG}, s{sG}, 1')
        A(f's_mul_i32 s{sTAG}, s{sG}, 0x9e3779b1')
        A(f's_xor_b32 s{sTAG}, s{sTAG}, 0x5bd1e995')
        A(f'v_mov_b32 v{vT+6}, s{sTAG}')

    def q_compute(self):
        A = self.A
        QX, QB = self.QX, self.QB
        DQ = vO
        A(f'v_lshrrev_b32 v{vT+2}, 2, v{vC}')
        A(f'v_lshl_add_u32 v{vT+2}, v{vG_}, 3, v{vT+2}')
        A(f'v_lshlrev_b32 v{vT+2}, 7, v{vT+2}')
        A(f'v_and_b32 v{vT+3}, 3, v{vC}')
        A(f'v_lshl_add_u32 v{vT+2}, v{vT+3}, 3, v{vT+2}')
        A(f'v_add_u32 v{vT+2}, {L_WQ}, v{vT+2}')
        A(f'v_and_b32 v{vT+3}, 7, v{vC}')
        A(f'v_lshlrev_b32 v{vT+3}, 14, v{vT+3}')
        A(f'v_lshrrev_b32 v{vT+4}, 3, v{vC}')
        A(f'v_cmp_ne_u32 s[{sMG1}:{sMG1+1}], 0, v{vT+4}')
        A(f'v_lshl_add_u32 v{vT+3}, v{vT+4}, 6, v{vT+3}')
        A(f'v_lshl_add_u32 v{vT+3}, v{vG_}, 4, v{vT+3}')
        A(f's_lshl_b32 s{sU+1}, s{sU}, 8')
        A(f's_add_u32 s{sU+1}, s{sU+1}, {WS_Q}')
        for q in range(4):
            A(f'v_mov_b32 v{vS + 2*q + 1}, s{sTAG}')

        def reads(kt):
            A(f's_waitcnt vmcnt({53 - 4*kt})')
            for ct in range(4):
                r = QB + (kt & 1)*16 + ct*4
                A(f'ds_read_b64_tr_b16 {vr(r, 2)}, v{vT+2} offset:{kt*4096 + ct*32}')
                A(f'ds_read_b64_tr_b16 {vr(r + 2, 2)}, v{vT+2} offset:{kt*4096 + ct*32 + 512}')
        reads(0)
        for kt in range(14):
            if kt < 13:
                reads(kt + 1)
                A('s_waitcnt lgkmcnt(8)')
            else:
                self.stamp(3)
                A('s_waitcnt lgkmcnt(0)')
            for ct in range(4):
                c = '0' if kt == 0 else vr(DQ + 4*ct)
                A(f'v_mfma_f32_16x16x32_bf16 {vr(DQ + 4*ct)}, {vr(QB + (kt & 1)*16 + 4*ct)}, {vr(QX + 4*kt)}, {c}')
        A('s_nop 7')
        for st in range(2):
            for r in range(4):
                A(f'v_cndmask_b32 v{vB + r}, v{DQ + 4*st + r}, v{DQ + 8 + 4*st + r}, s[{sMG1}:{sMG1+1}]')
            A(f'v_cvt_pk_bf16_f32 v{vS + 4*st}, v{vB}, v{vB+1}')
            A(f'v_cvt_pk_bf16_f32 v{vS + 4*st + 2}, v{vB+2}, v{vB+3}')
            self.hstore(vr(vS + 4*st), f'v{vT+3}', sU+1, 128*st)
        self.hflush(sU+2)

    def q_gather(self):
        A = self.A
        F = vV[0]
        if self.qdelay:
            self.wait_flag(2)
        A(f'v_mov_b32 v{vT+8}, {L_FL}')
        A(f'v_mov_b32 v{vT+5}, 1')
        self.L('M_qpoll')
        A(f's_and_b32 s{sU+1}, s{sTO}, {self.bper - 1}')
        A(f's_cmp_eq_u32 s{sU+1}, 1')
        A(f's_cselect_b32 s{sU+1}, {WS_B}, 0')
        A(f's_add_u32 s{sU+1}, s{sU+1}, s{sU+4}')
        for n in range(2):
            A(f'buffer_load_dwordx4 {vr(F + 4*n)}, v{vT}, {srd(sWS)}, s{sU+1} offen offset:{1024*n} sc1')
        A('s_waitcnt vmcnt(0)')
        for q in range(4):
            A(f'v_xor_b32 v{F + 2*q + 1}, s{sTAG}, v{F + 2*q + 1}')
        A(f'v_or3_b32 v{vT+2}, v{F+1}, v{F+3}, v{F+5}')
        A(f'v_or_b32 v{vT+2}, v{vT+2}, v{F+7}')
        A(f'v_cmp_ne_u32 vcc, 0, v{vT+2}')
        self.poll_tail('M_qpoll')
        A(f'ds_write2_b32 v{vT+7}, v{F}, v{F+2} offset0:0 offset1:1')
        A(f'ds_write2_b32 v{vT+7}, v{F+4}, v{F+6} offset0:128 offset1:129')
        A(f'ds_write_b64 v{vT+8}, {vr(vT+5, 2)}')

    def poll_tail(self, lab):
        A = self.A
        A(f's_sub_u32 s{sTO}, s{sTO}, 1')
        A(f's_cmp_eq_u32 s{sTO}, 0')
        A('s_cbranch_scc1 M_end')
        A(f's_cbranch_vccnz {lab}')

    def k_load(self, buf, j):
        so = f's{sT0}' if j >> 3 else f's{sKO}'
        self.A(f'buffer_load_dwordx4 {ar(aK[buf] + 4*j)}, v{vKOFF}, {srd(sK)}, {so} offen offset:{(j & 7)*64} {self.kpol}')

    def v_load(self, buf, half, i):
        so = f's{sT1}' if i >> 2 else f's{sVO}'
        self.A(f'buffer_load_dwordx4 {vr(vV[buf] + half*32 + 4*i)}, v{vVOFF}, {srd(sV)}, {so} offen '
               f'offset:{(i & 3)*512 + half*256} {self.vpol}')

    def k_issue(self, buf, step=16384):
        self.A(f's_add_u32 s{sT0}, s{sKO}, 8192')
        for j in range(16):
            self.k_load(buf, j)
        self.A(f's_add_u32 s{sKO}, s{sKO}, {step}')

    def v_issue(self, buf, step=16384):
        self.A(f's_add_u32 s{sT1}, s{sVO}, 8192')
        if self.vf:
            for half in range(2):
                for i in range(8):
                    self.v_load(buf, half, i)
        else:
            for i in range(8):
                for half in range(2):
                    self.v_load(buf, half, i)
        self.A(f's_add_u32 s{sVO}, s{sVO}, {step}')

    def xlane(self, t0, t1, op):
        A = self.A
        for ins in ('v_permlane16_swap_b32', 'v_permlane32_swap_b32'):
            A(f'v_mov_b32 v{t1}, v{t0}')
            A('s_nop 1')
            A(f'{ins} v{t0}, v{t1}')
            A('s_nop 0')
            A(f'{op} v{t0}, v{t0}, v{t1}')

    def tile(self, buf, refill, wk, wv):
        A0 = self.A
        def A(x):
            if self.nocomp and (x.startswith('v_') or x.startswith('s_nop')):
                return
            A0(x)
        A(f's_waitcnt vmcnt({wk})')
        kf = self.kf and refill
        if kf:
            A(f's_add_u32 s{sT0}, s{sKO}, 8192')
        for j in range(16):
            T, s = j >> 3, j & 7
            c = '0' if s == 0 else vr(vS + 4*T)
            A(f'v_mfma_f32_16x16x32_bf16 {vr(vS + 4*T)}, {ar(aK[buf] + 4*j)}, {ar(aQ + 4*s)}, {c}')
            if kf:
                self.k_load(buf, j)
        if kf:
            A(f's_add_u32 s{sKO}, s{sKO}, 16384')
            A('s_nop 5')
        elif refill:
            self.k_issue(buf)
        else:
            A('s_nop 6')
        t0, t1, t2, al = vT, vT + 1, vT + 2, vT + 3
        if self.rs:
            for u in range(4):
                A(f'v_cvt_pk_bf16_f32 v{vPA+u}, v{vS+2*u}, v{vS+2*u+1}')
            for u in range(4):
                A(f'v_lshlrev_b32 v{vS+2*u}, 16, v{vPA+u}')
                A(f'v_and_b32 v{vS+2*u+1}, 0xffff0000, v{vPA+u}')
        A(f'v_max3_f32 v{t0}, v{vS}, v{vS+1}, v{vS+2}')
        A(f'v_max3_f32 v{t0}, v{t0}, v{vS+3}, v{vS+4}')
        A(f'v_max3_f32 v{t0}, v{t0}, v{vS+5}, v{vS+6}')
        A(f'v_max_f32 v{t0}, v{t0}, v{vS+7}')
        self.xlane(t0, t1, 'v_max_f32')
        A(f'v_mul_f32 v{t0}, s{sC1}, v{t0}')
        A(f'v_max_f32 v{t0}, v{vM}, v{t0}')
        A(f'v_sub_f32 v{t1}, v{vM}, v{t0}')
        A(f'v_exp_f32 v{al}, v{t1}')
        A(f'v_mov_b32 v{vM}, v{t0}')
        for e in range(8):
            A(f'v_fma_f32 v{vS+e}, v{vS+e}, s{sC1}, -v{t0}')
        for e in range(8):
            A(f'v_exp_f32 v{vS+e}, v{vS+e}')
        A(f'v_mov_b32_dpp v{vAL}, v{al} quad_perm:[0,0,2,2] row_mask:0xf bank_mask:0xf')
        A(f'v_mov_b32_dpp v{vAL+1}, v{al} quad_perm:[1,1,3,3] row_mask:0xf bank_mask:0xf')
        for u in range(4):
            A(f'v_cvt_pk_bf16_f32 v{vPB+u}, v{vS+2*u}, v{vS+2*u+1}')
        A(f'v_add_f32 v{t1}, v{vS}, v{vS+1}')
        A(f'v_add_f32 v{t2}, v{vS+2}, v{vS+3}')
        A(f'v_add_f32 v{t0}, v{vS+4}, v{vS+5}')
        A(f'v_add_f32 v{t1}, v{t1}, v{t2}')
        A(f'v_add_f32 v{t2}, v{vS+6}, v{vS+7}')
        A(f'v_add_f32 v{t0}, v{t0}, v{t2}')
        A(f'v_add_f32 v{t1}, v{t1}, v{t0}')
        A(f'v_fma_f32 v{vL}, v{vL}, v{al}, v{t1}')
        for u in range(4):
            A(f'v_and_b32 v{vPA+u}, v{vMA}, v{vPB+u}')
            A(f'v_and_b32 v{vPB+u}, v{vMB}, v{vPB+u}')
        for j in range(16):
            A(f'v_pk_mul_f32 {vr(vO + 2*j, 2)}, {vr(vO + 2*j, 2)}, {vr(vAL, 2)}')
        A(f's_waitcnt vmcnt({wv})')
        vf = self.vf and refill
        if vf:
            A(f's_add_u32 s{sT1}, s{sVO}, 8192')
        for half in range(2):
            P = vPB if half else vPA

            def perms(j):
                b = vB + 4 * (j % 3)
                t = j >> 1
                sel = sSHI if j & 1 else sSLO
                for u in range(4):
                    lo = vV[buf] + half*32 + 4*(2*u) + t
                    hi = vV[buf] + half*32 + 4*(2*u + 1) + t
                    A(f'v_perm_b32 v{b+u}, v{hi}, v{lo}, s{sel}')

            perms(0)
            for j in range(8):
                if j < 7:
                    perms(j + 1)
                else:
                    A('s_nop 1')
                A(f'v_mfma_f32_16x16x32_bf16 {vr(vO + 4*j)}, {vr(P)}, {vr(vB + 4*(j % 3))}, {vr(vO + 4*j)}')
            if vf:
                for i in range(8):
                    self.v_load(buf, half, i)
        if vf:
            A(f's_add_u32 s{sVO}, s{sVO}, 16384')
        elif refill:
            self.v_issue(buf)

    def stream_init(self):
        A = self.A
        A(f'v_mov_b32 v{vM}, 0xff7fffff')
        A(f'v_mov_b32 v{vL}, 0')
        A(f'v_and_b32 v{vT}, 2, v{vC}')
        A(f'v_cmp_eq_u32 vcc, 0, v{vT}')
        self.masks()
        A(f'v_cndmask_b32 v{vMA}, 0, -1, vcc')
        A(f'v_not_b32 v{vMB}, v{vMA}')
        for j in range(32):
            A(f'v_mov_b32 v{vO+j}, 0')

    def q_frags(self):
        A = self.A
        A(f'v_and_b32 v{vT}, 1, v{vC}')
        A(f'v_lshlrev_b32 v{vT}, 9, v{vT}')
        A(f'v_lshl_add_u32 v{vT}, v{vG_}, 4, v{vT}')
        for s in range(8):
            A(f'ds_read_b128 {ar(aQ + 4*s)}, v{vT} offset:{L_Q + 64*s}')
        A('s_waitcnt lgkmcnt(0)')

    def startup_loads(self, second_step, bar=False):
        A = self.A
        sd = self.sd
        self.k_issue(0)
        if sd < 32:
            A(f's_waitcnt vmcnt({sd - 16})')
        self.v_issue(0)
        if bar:
            A('s_barrier')
        if sd < 48:
            A(f's_waitcnt vmcnt({sd - 16})')
        self.stamp(4)
        self.k_issue(1, second_step)
        if sd < 64:
            A(f's_waitcnt vmcnt({sd - 16})')
        self.v_issue(1, second_step)

    def wo_frags(self):
        A = self.A
        R = vV[0]
        A(f's_and_b32 s{sU+6}, s2, 31')
        A(f's_mul_i32 s{sU+6}, s{sU+6}, {128*896}')
        A(f's_lshr_b32 s{sU+1}, s2, 5')
        A(f's_lshl_b32 s{sU+1}, s{sU+1}, 7')
        A(f's_add_u32 s{sU+6}, s{sU+6}, s{sU+1}')
        A(f'v_mul_u32_u24 v{vT+8}, 7168, v{vG_}')
        A(f'v_lshl_add_u32 v{vT+8}, v{vC}, 3, v{vT+8}')
        for ks in range(4):
            for i in range(8):
                if (i & 3) == 0:
                    A(f's_add_u32 s{sU+1}, s{sU+6}, {ks*32*896 + (i >> 2)*3584}')
                A(f'buffer_load_dwordx2 {vr(R + ks*16 + 2*i, 2)}, v{vT+8}, {srd(sWO)}, s{sU+1} offen offset:{(i & 3)*896} nt')
        for ks in range(4):
            A(f's_waitcnt vmcnt({24 - 8*ks})')
            for t in range(2):
                for u in range(4):
                    lo = R + ks*16 + 2*(2*u) + t
                    hi = R + ks*16 + 2*(2*u+1) + t
                    A(f'v_perm_b32 v{vS + (2*t)*4 + u}, v{hi}, v{lo}, s{sSLO}')
                    A(f'v_perm_b32 v{vS + (2*t+1)*4 + u}, v{hi}, v{lo}, s{sSHI}')
            for q in range(16):
                A(f'v_accvgpr_write_b32 a{ks*16 + q}, v{vS + q}')

    def gather(self, b0, n):
        A = self.A
        D = vV[0]
        ML = vO
        ns = 4 * n
        ALL = (1 << ns) - 1
        sD, sM, sDone, sGot, sRdy, sNeed = sU + 2, sU + 3, sU + 4, sKO, sVO, sT0
        sW = 96
        sRnd, sD2 = 12, 13
        sW2 = 4
        A(f's_and_b32 s{sU}, s2, 28')
        A(f's_add_u32 s{sU}, s{sU}, {b0*32}')
        A(f's_and_b32 s{sU+1}, s2, 3')
        A(f's_lshl_b32 s{sD}, s{sU}, 12')
        A(f's_and_b32 s{sU+6}, s{sU+1}, 1')
        A(f's_lshl_b32 s{sU+6}, s{sU+6}, 9')
        A(f's_add_u32 s{sD}, s{sD}, s{sU+6}')
        A(f's_lshr_b32 s{sU+6}, s{sU+1}, 1')
        A(f's_lshl_b32 s{sU+6}, s{sU+6}, 8')
        A(f's_add_u32 s{sD}, s{sD}, s{sU+6}')
        A(f's_add_u32 s{sD}, s{sD}, {WS_P}')
        A(f's_lshl_b32 s{sM}, s{sU}, 7')
        A(f's_lshr_b32 s{sU+1}, s{sU+1}, 1')
        A(f's_lshl_b32 s{sU+1}, s{sU+1}, 4')
        A(f's_add_u32 s{sM}, s{sM}, s{sU+1}')
        A(f's_add_u32 s{sM}, s{sM}, {WS_ML}')
        A(f'v_lshlrev_b32 v{vT+7}, 10, v{vG_}')
        A(f'v_lshl_add_u32 v{vT+7}, v{vC}, 4, v{vT+7}')
        A(f'v_min_u32 v{vT+8}, {ns-1}, v{vC}')
        A(f'v_lshrrev_b32 v{vT+6}, 2, v{vT+8}')
        A(f'v_lshlrev_b32 v{vT+6}, 12, v{vT+6}')
        A(f'v_and_b32 v{vT+8}, 3, v{vT+8}')
        A(f'v_lshl_add_u32 v{vT+8}, v{vT+8}, 7, v{vT+6}')
        A(f'v_lshlrev_b32 v{vT+6}, 4, v{vC}')
        A(f'v_lshl_add_u32 v{vT+6}, v{vG_}, 2, v{vT+6}')
        A(f's_not_b32 s{sU+1}, s{sTAG}')
        for src in range(ns):
            A(f'v_mov_b32 v{D + 4*src + 1}, s{sU+1}')
        A(f'v_mov_b32 v{ML}, 0')
        A(f'v_mov_b32 v{ML+1}, s{sU+1}')
        A(f'v_mov_b32 v{ML+2}, 1.0')
        A(f'v_mov_b32 v{ML+3}, s{sU+1}')
        A(f's_mov_b32 s{sDone}, 0')
        A(f's_mov_b32 s{sGot}, 0')
        A(f's_mov_b32 s{sRdy}, 0')
        if self.pollstart:
            self.wait_flag(4)
        top = self.lab('G')
        if self.ts and b0 < 6:
            self.stamp(3)
            A(f's_mov_b32 s{sCNT}, 0')
        self.L(top)
        if self.ts and b0 < 6:
            A(f's_add_u32 s{sCNT}, s{sCNT}, 1')
            A(f's_mov_b32 s{sTS+8}, s{sCNT}')
            A(f's_mov_b32 s{sTS+9}, 0')
        A(f's_andn2_b32 s{sU+1}, {ALL}, s{sRdy}')
        A(f's_mov_b32 exec_lo, s{sU+1}')
        A('s_mov_b32 exec_hi, 0')
        A(f'buffer_load_dwordx4 {vr(ML)}, v{vT+8}, {srd(sWS)}, s{sM} offen sc1')
        A('s_mov_b64 exec, -1')
        A(f's_bcnt1_i32_b32 s{sU+1}, s{sU+1}')
        A(f's_cmp_le_u32 s{sU+1}, {self.spec}')
        A(f's_cselect_b32 s{sNeed}, {ALL}, s{sRdy}')
        A(f's_andn2_b32 s{sNeed}, s{sNeed}, s{sGot}')
        for k in range(n):
            sk = self.lab('GS')
            A(f's_bfe_u32 s{sU+1}, s{sNeed}, {(4 << 16) | (4*k)}')
            A(f's_cbranch_scc0 {sk}')
            for sp in range(4):
                src = 4*k + sp
                A(f's_bitcmp1_b32 s{sNeed}, {src}')
                A('s_cselect_b64 exec, -1, 0')
                A(f's_add_u32 s{sU+1}, s{sD}, {k*32*4096 + sp*4096}')
                A(f'buffer_load_dwordx4 {vr(D + 4*src)}, v{vT+7}, {srd(sWS)}, s{sU+1} offen sc1')
            A('s_mov_b64 exec, -1')
            self.L(sk)
        A('s_waitcnt vmcnt(0)')
        A(f'v_xor_b32 v{vT+2}, s{sTAG}, v{ML+1}')
        A(f'v_xor_b32 v{vT+3}, s{sTAG}, v{ML+3}')
        A(f'v_or_b32 v{vT+2}, v{vT+2}, v{vT+3}')
        A(f'v_cmp_eq_u32 vcc, 0, v{vT+2}')
        A(f'v_max_f32_dpp v{vT+2}, v{ML}, v{ML} quad_perm:[1,0,3,2] row_mask:0xf bank_mask:0xf')
        A(f's_and_b32 s{sRdy}, vcc_lo, {ALL}')
        A('s_nop 0')
        A(f'v_max_f32_dpp v{vT+2}, v{vT+2}, v{vT+2} quad_perm:[2,3,0,1] row_mask:0xf bank_mask:0xf')
        A(f'v_sub_f32 v{vT+2}, v{ML}, v{vT+2}')
        A(f'v_exp_f32 v{vT+2}, v{vT+2}')
        A('s_nop 0')
        A(f'v_mul_f32 v{vT+3}, v{vT+2}, v{ML+2}')
        A('s_nop 1')
        A(f'v_add_f32_dpp v{vT+3}, v{vT+3}, v{vT+3} quad_perm:[1,0,3,2] row_mask:0xf bank_mask:0xf')
        A('s_nop 1')
        A(f'v_add_f32_dpp v{vT+3}, v{vT+3}, v{vT+3} quad_perm:[2,3,0,1] row_mask:0xf bank_mask:0xf')
        A(f'v_rcp_f32 v{vT+3}, v{vT+3}')
        A('s_nop 0')
        A(f'v_mul_f32 v{vT+5}, v{vT+2}, v{vT+3}')
        for k in range(n):
            sk = self.lab('GB')
            d = D + 16*k
            A(f's_bitcmp1_b32 s{sDone}, {k}')
            A(f's_cbranch_scc1 {sk}')
            for sp in range(4):
                A(f'v_xor_b32 v{vB+2*sp}, s{sTAG}, v{d+4*sp+1}')
                A(f'v_xor_b32 v{vB+2*sp+1}, s{sTAG}, v{d+4*sp+3}')
            for sp in range(4):
                A(f'v_or_b32 v{vB+2*sp}, v{vB+2*sp}, v{vB+2*sp+1}')
            for sp in range(4):
                A(f'v_cmp_ne_u32 s[{sW2+2*sp}:{sW2+2*sp+1}], 0, v{vB+2*sp}')
            for sp in range(4):
                A(f'v_readlane_b32 s{sW+sp}, v{vT+5}, {4*k + sp}')
            for sp in range(4):
                A(f's_cmp_eq_u64 s[{sW2+2*sp}:{sW2+2*sp+1}], 0')
                A(f's_cselect_b32 s{sU+1}, {1 << (4*k + sp)}, 0')
                A(f's_or_b32 s{sGot}, s{sGot}, s{sU+1}')
            A(f'v_mul_f32 v{vT+3}, s{sW}, v{d}')
            A(f'v_mul_f32 v{vT+4}, s{sW}, v{d+2}')
            A(f's_and_b32 s{sU+1}, s{sGot}, s{sRdy}')
            A(f's_bfe_u32 s{sU+1}, s{sU+1}, {(4 << 16) | (4*k)}')
            A(f's_cmp_lg_u32 s{sU+1}, 15')
            A(f's_cbranch_scc1 {sk}')
            for sp in range(1, 4):
                A(f'v_fmac_f32 v{vT+3}, s{sW+sp}, v{d+4*sp}')
                A(f'v_fmac_f32 v{vT+4}, s{sW+sp}, v{d+4*sp+2}')
            A(f'v_cvt_pk_bf16_f32 v{vT+3}, v{vT+3}, v{vT+4}')
            A(f'ds_write_b32 v{vT+6}, v{vT+3} offset:{L_o + (b0 + k)*272}')
            A(f's_bitset1_b32 s{sDone}, {k}')
            self.L(sk)
        A(f's_sub_u32 s{sTO}, s{sTO}, 1')
        A(f's_cmp_eq_u32 s{sTO}, 0')
        A('s_cbranch_scc1 M_end')
        A(f's_cmp_lg_u32 s{sDone}, {(1 << n) - 1}')
        A(f's_cbranch_scc1 {top}')

    def gemv_prep(self):
        A = self.A
        self.masks()
        A(f'v_and_b32 v{vAL}, 7, v{vC}')
        A(f'v_mul_u32_u24 v{vAL}, 272, v{vAL}')
        A(f'v_lshl_add_u32 v{vAL}, v{vG_}, 4, v{vAL}')
        A(f'v_lshlrev_b32 v{vAL+1}, 4, v{vLANE}')
        A(f's_lshl_b32 s{sU+7}, s2, 12')
        A(f's_add_u32 s{sU+7}, s{sU+7}, {WS_Y}')
        for q in range(8):
            A(f'v_mov_b32 v{vV[1] + 2*q + 1}, s{sTAG}')

    def gemv(self):
        A = self.A
        AF = vO
        Y = vO + 16
        P = vV[1]
        for ks in range(4):
            A(f'ds_read_b128 {vr(AF + 4*ks)}, v{vAL} offset:{L_o + 64*ks}')
        for ks in range(4):
            A(f's_waitcnt lgkmcnt({3-ks})')
            for jj in range(4):
                y = Y + 4*jj
                c = '0' if ks == 0 else vr(y)
                A(f'v_mfma_f32_16x16x32_bf16 {vr(y)}, {vr(AF + 4*ks)}, {ar(ks*16 + jj*4)}, {c}')
        A('s_nop 4')
        for jj in range(4):
            for rr in range(2):
                A(f'v_cndmask_b32 v{P + rr*8 + 2*jj}, v{Y + 4*jj + rr}, v{Y + 4*jj + 2 + rr}, s[{sMG2}:{sMG2+1}]')
            if jj & 1:
                for rr in range(2):
                    A(f'buffer_store_dwordx4 {vr(P + rr*8 + 2*(jj-1))}, v{vAL+1}, {srd(sWS)}, s{sU+7} offen offset:{(rr*2 + (jj >> 1))*1024} sc1')

    SO = (sOWN, sISS, sTK, sCNT, 12, 13, 14, 15)

    def reduce_prep(self):
        A = self.A
        R = vPUB
        SO = self.SO
        A(f's_lshr_b32 s{sU+1}, s2, 5')
        A(f's_lshl_b32 s{sGB}, s{sU+1}, 7')
        A(f's_lshl_b32 s{SO[0]}, s{sU+1}, 17')
        A(f's_and_b32 s{sU+1}, s2, 31')
        A(f's_lshl_b32 s{sU+6}, s{sU+1}, 7')
        A(f's_add_u32 s{SO[0]}, s{SO[0]}, s{sU+6}')
        A(f's_add_u32 s{SO[0]}, s{SO[0]}, {WS_Y}')
        for n in range(1, 8):
            A(f's_add_u32 s{SO[n]}, s{SO[0]}, {n*16384}')
        A(f'v_lshlrev_b32 v{R}, 12, v{vG_}')
        A(f'v_lshl_add_u32 v{R}, v{vC}, 3, v{R}')
        for bit, mul in ((4, 896), (3, 4), (2, 2*896), (1, 4*896), (0, 64)):
            A(f's_bitcmp1_b32 s{sU+1}, {bit}')
            A(f's_cselect_b32 s{sU+6}, {mul}, 0')
            A(f's_add_u32 s{sGB}, s{sGB}, s{sU+6}')
        A(f'v_lshrrev_b32 v{R+1}, 1, v{vC}')
        A(f'v_lshlrev_b32 v{R+1}, 3, v{R+1}')
        A(f'v_and_b32 v{R+2}, 1, v{vC}')
        A(f'v_lshl_add_u32 v{R+1}, v{R+2}, 1, v{R+1}')
        A(f's_load_dword s{sG}, s[18:19], {WS_G}')
        A('s_waitcnt lgkmcnt(0)')

    def reduce(self):
        A = self.A
        R = vPUB
        E = vV[0]
        ns = self.nset

        if self.r2:
            sDn, sC = sKO, 4
            A(f's_not_b32 s{sU+1}, s{sTAG}')
            for n in range(8):
                A(f'v_mov_b32 v{E + 2*n + 1}, s{sU+1}')
            A(f's_mov_b32 s{sDn}, 0')
            self.L('M_p2')
            for n in range(8):
                so = self.SO[n]
                A(f's_bitcmp0_b32 s{sDn}, {n}')
                A('s_cselect_b64 exec, -1, 0')
                A(f'buffer_load_dwordx2 {vr(E + 2*n, 2)}, v{R}, {srd(sWS)}, s{so} offen sc1')
            A('s_mov_b64 exec, -1')
            A(f's_sub_u32 s{sTO}, s{sTO}, 1')
            A(f's_cmp_eq_u32 s{sTO}, 0')
            A('s_cbranch_scc1 M_end')
            A('s_waitcnt vmcnt(0)')
            for q in range(8):
                A(f'v_xor_b32 v{vB + q}, s{sTAG}, v{E + 2*q + 1}')
            A(f'v_or3_b32 v{vT+2}, v{vB}, v{vB+1}, v{vB+2}')
            A(f'v_or3_b32 v{vT+3}, v{vB+3}, v{vB+4}, v{vB+5}')
            A(f'v_or3_b32 v{vT+2}, v{vT+2}, v{vB+6}, v{vB+7}')
            A(f'v_or_b32 v{vT+2}, v{vT+2}, v{vT+3}')
            A(f'v_cmp_ne_u32 vcc, 0, v{vT+2}')
            A(f'v_add_f32 v{vS}, v{E}, v{E+2}')
            A(f'v_add_f32 v{vS+1}, v{E+4}, v{E+6}')
            A(f'v_add_f32 v{vS+2}, v{E+8}, v{E+10}')
            A(f'v_add_f32 v{vS+3}, v{E+12}, v{E+14}')
            A(f'v_add_f32 v{vS}, v{vS}, v{vS+1}')
            A(f'v_add_f32 v{vS+2}, v{vS+2}, v{vS+3}')
            A(f'v_add_f32 v{vT+4}, v{vS}, v{vS+2}')
            A('s_cbranch_vccz M_p2ok')
            for h in range(2):
                for q in range(4):
                    A(f'v_cmp_ne_u32 s[{sC+2*q}:{sC+2*q+1}], 0, v{vB + 4*h + q}')
                A('s_nop 0')
                for q in range(4):
                    A(f's_cmp_eq_u64 s[{sC+2*q}:{sC+2*q+1}], 0')
                    A(f's_cselect_b32 s{sU+1}, {1 << (4*h + q)}, 0')
                    A(f's_or_b32 s{sDn}, s{sDn}, s{sU+1}')
            A('s_branch M_p2')
        else:
            def issue(i):
                for n in range(8):
                    so = self.SO[n]
                    A(f'buffer_load_dwordx2 {vr(E + 16*i + 2*n, 2)}, v{R}, {srd(sWS)}, s{so} offen sc1')
            for i in range(ns):
                issue(i)
                if i < ns - 1:
                    A(f's_sleep {self.stag}')
            self.L('M_p2')
            for i in range(ns):
                e = E + 16*i
                A(f's_waitcnt vmcnt({8*(ns-1)})')
                for q in range(8):
                    A(f'v_xor_b32 v{e + 2*q + 1}, s{sTAG}, v{e + 2*q + 1}')
                A(f'v_or3_b32 v{vT+2}, v{e+1}, v{e+3}, v{e+5}')
                A(f'v_or3_b32 v{vT+3}, v{e+7}, v{e+9}, v{e+11}')
                A(f'v_or3_b32 v{vT+2}, v{vT+2}, v{e+13}, v{e+15}')
                A(f'v_or_b32 v{vT+2}, v{vT+2}, v{vT+3}')
                A(f'v_cmp_ne_u32 vcc, 0, v{vT+2}')
                for st in (1, 2, 4):
                    for q in range(0, 8, 2*st):
                        dst = vT + 4 if st == 4 else e + 2*q
                        A(f'v_add_f32 v{dst}, v{e + 2*q}, v{e + 2*(q+st)}')
                A('s_cbranch_vccz M_p2ok')
                issue(i)
            A(f's_sub_u32 s{sTO}, s{sTO}, 1')
            A(f's_cmp_lg_u32 s{sTO}, 0')
            A('s_cbranch_scc1 M_p2')
            A('s_branch M_end')
        self.L('M_p2ok')
        self.xlane(vT + 4, vT + 5, 'v_add_f32')
        A(f'v_cvt_pk_bf16_f32 v{vT+2}, v{vT+4}, v{vT+4}')
        A('s_mov_b64 exec, 0xffff')
        A(f'buffer_store_short v{vT+2}, v{R+1}, {srd(sOUT)}, s{sGB} offen')
        A('s_mov_b64 exec, 1')
        A('s_cmp_lg_u32 s2, 0')
        A('s_cbranch_scc1 M_nogen')
        A(f'v_mov_b32 v{vT+7}, 0')
        A(f's_add_u32 s{sG}, s{sG}, 1')
        A(f'v_mov_b32 v{vT+8}, s{sG}')
        A(f'buffer_store_dword v{vT+8}, v{vT+7}, {srd(sWS)}, 0 offen offset:{WS_G} sc1')
        self.L('M_nogen')
        A('s_mov_b64 exec, -1')

    def main(self):
        A = self.A
        self.o += ['.globl ' + NAME, '.p2align 8', f'.type {NAME},@function', NAME + ':']
        self.stamp(0)
        if self.ts:
            A('s_memtime s[92:93]')
            for i in range(1, 6):
                A(f's_mov_b64 s[{sTS+2*i}:{sTS+2*i+1}], 0')
        self.prologue()
        A('s_cmp_eq_u32 s3, 2')
        A('s_cbranch_scc1 M_w2')
        if self.bar0 == 2:
            A('s_cmp_eq_u32 s3, 0')
            A('s_cbranch_scc1 M_w0')
        A('s_barrier')
        A('s_cmp_eq_u32 s3, 1')
        A('s_cbranch_scc1 M_w1')
        A('s_cmp_eq_u32 s3, 3')
        A('s_cbranch_scc1 M_w3')

        self.L('M_w0')
        self.startup_loads(16384 * 3, self.bar0 == 2)
        self.stream_init()
        A(f's_waitcnt vmcnt({max(self.sd - 16, 0)})')
        self.set_flag(2)
        self.stamp(3)
        if not self.noq:
            self.wait_flag(0, True)
        self.stamp(1)
        self.q_frags()
        S = self.S
        P = (64 - S) * 4
        PUB = vPUB
        for q in range(10):
            A(f'v_mov_b32 v{PUB + 2*q + 1}, s{sTAG}')
        A(f'v_lshlrev_b32 v{vT+8}, 4, v{vLANE}')
        A(f's_mov_b32 s{sOWN}, s{sKO}')
        A(f's_mov_b32 s{sISS}, 4')
        A(f's_lshr_b32 s{sU}, s2, 2')
        A(f's_lshl_b32 s{sGB}, s{sU}, 22')
        A(f's_add_u32 s{sGB}, s{sGB}, {S * 16384}')
        A(f's_lshl_b32 s{sU}, s{sU}, 8')
        A(f's_add_u32 s{sU}, s{sU}, {WS_C}')
        A(f's_add_u32 s{sCB}, s18, s{sU}')
        A(f's_addc_u32 s{sCB+1}, s19, 0')
        A(f's_mov_b32 s{sTK}, {P}')

        def ticket():
            if P:
                A(f's_mov_b32 s{sTK}, 1')
                A(f's_atomic_add s{sTK}, s[{sCB}:{sCB+1}], 0 glc')

        def next_tile(buf):
            st, jn = self.lab('NS'), self.lab('NJ')
            A(f's_cmp_lt_u32 s{sISS}, {S}')
            A(f's_cbranch_scc1 {st}')
            A('s_waitcnt lgkmcnt(0)')
            A(f's_cmp_ge_u32 s{sTK}, {P}')
            A(f's_cbranch_scc1 M_drain{buf}')
            A(f's_and_b32 s{sU}, s{sTK}, 3')
            A(f's_lshl_b32 s{sU}, s{sU}, 20')
            A(f's_lshr_b32 s{sU+1}, s{sTK}, 2')
            A(f's_lshl_b32 s{sU+1}, s{sU+1}, 14')
            A(f's_add_u32 s{sKO}, s{sGB}, s{sU}')
            A(f's_add_u32 s{sKO}, s{sKO}, s{sU+1}')
            ticket()
            A(f's_branch {jn}')
            self.L(st)
            A(f's_mov_b32 s{sKO}, s{sOWN}')
            A(f's_add_u32 s{sOWN}, s{sOWN}, 16384')
            A(f's_add_u32 s{sISS}, s{sISS}, 1')
            if buf == 0:
                A(f's_cmp_eq_u32 s{sISS}, 41')
                A('s_cbranch_scc1 M_merge')
                self.L('M_merged')
            A(f's_cmp_lg_u32 s{sISS}, {S}')
            A(f's_cbranch_scc1 {jn}')
            ticket()
            self.L(jn)
            A(f's_mov_b32 s{sVO}, s{sKO}')

        self.L('M_loop')
        next_tile(0)
        self.tile(0, True, 48, 48)
        next_tile(1)
        self.tile(1, True, 48, 48)
        A('s_branch M_loop')

        self.L('M_merge')
        self.wait_flag(7)
        A(f's_mov_b32 s{sSAME}, s{sU+9}')
        self.wait_flag(3)
        A(f'v_lshlrev_b32 v{vT+4}, 4, v{vLANE}')
        A(f'ds_read_b128 {vr(vB)}, v{vT+4} offset:{L_H + 8*1024}')
        A('s_waitcnt lgkmcnt(0)')
        A(f'v_max_f32 v{vT}, v{vM}, v{vB}')
        A(f'v_sub_f32 v{vT+1}, v{vM}, v{vT}')
        A(f'v_sub_f32 v{vT+2}, v{vB}, v{vT}')
        A(f'v_exp_f32 v{vT+1}, v{vT+1}')
        A(f'v_exp_f32 v{vT+2}, v{vT+2}')
        A(f'v_mov_b32 v{vM}, v{vT}')
        A('s_nop 0')
        A(f'v_mul_f32 v{vL}, v{vL}, v{vT+1}')
        A(f'v_fmac_f32 v{vL}, v{vB+1}, v{vT+2}')
        A(f'v_mov_b32_dpp v{vAL}, v{vT+1} quad_perm:[0,0,2,2] row_mask:0xf bank_mask:0xf')
        A(f'v_mov_b32_dpp v{vAL+1}, v{vT+1} quad_perm:[1,1,3,3] row_mask:0xf bank_mask:0xf')
        A(f'v_mov_b32_dpp v{vT+5}, v{vT+2} quad_perm:[0,0,2,2] row_mask:0xf bank_mask:0xf')
        A(f'v_mov_b32_dpp v{vT+6}, v{vT+2} quad_perm:[1,1,3,3] row_mask:0xf bank_mask:0xf')
        for half in range(2):
            for j in range(4):
                A(f'ds_read_b128 {vr(vS + 4*j)}, v{vT+4} offset:{L_H + (half*4 + j)*1024}')
            for j in range(8):
                A(f'v_pk_mul_f32 {vr(vO + half*16 + 2*j, 2)}, {vr(vO + half*16 + 2*j, 2)}, {vr(vAL, 2)}')
            A('s_waitcnt lgkmcnt(0)')
            for j in range(8):
                A(f'v_pk_fma_f32 {vr(vO + half*16 + 2*j, 2)}, {vr(vS + 2*j, 2)}, {vr(vT+5, 2)}, {vr(vO + half*16 + 2*j, 2)}')
        A('s_branch M_merged')

        for first in (1, 0):
            self.L(f'M_drain{first}')
            if not self.notail:
                A('s_barrier')
            A(f's_lshl_b32 s{sU}, s2, 12')
            A(f's_add_u32 s{sU}, s{sU}, {WS_P}')
            A(f's_lshl_b32 s{sU+2}, s2, 7')
            A(f's_add_u32 s{sU+2}, s{sU+2}, {WS_ML}')
            self.tile(first, False, 48, 32)
            self.tile(1 - first, False, 16, 0)
            if first == 1:
                A('s_branch M_pub')
        self.L('M_pub')
        self.stamp(2)
        if self.notail:
            A('s_branch M_fin')
        self.xlane(vL, vT, 'v_add_f32')
        A(f'v_mov_b32 v{PUB+16}, v{vM}')
        A(f'v_mov_b32 v{PUB+18}, v{vL}')
        A(f's_cmp_eq_u32 s{sSAME}, 2')
        A('s_cbranch_scc0 M_pubx')
        for pol in ('', ' sc1'):
            if pol:
                self.L('M_pubx')
            for j in range(8):
                A(f'v_cndmask_b32 v{vT+1}, v{vO+4*j}, v{vO+4*j+1}, s[{sMG1}:{sMG1+1}]')
                A(f'v_cndmask_b32 v{vT+2}, v{vO+4*j+2}, v{vO+4*j+3}, s[{sMG1}:{sMG1+1}]')
                A(f'v_cndmask_b32 v{PUB+2*j}, v{vT+1}, v{vT+2}, s[{sMG2}:{sMG2+1}]')
                if j & 1:
                    A(f'buffer_store_dwordx4 {vr(PUB + 2*(j-1))}, v{vT+8}, {srd(sWS)}, s{sU} offen offset:{1024*(j >> 1)}{pol}')
            A('s_mov_b64 exec, 3')
            A(f'buffer_store_dwordx4 {vr(PUB+16)}, v{vT+8}, {srd(sWS)}, s{sU+2} offen{pol}')
            A('s_mov_b64 exec, -1')
            if not pol:
                A('s_branch M_pubd')
        self.L('M_pubd')
        self.set_flag(4)
        self.stamp(3)
        A('s_branch M_fin')

        self.L('M_w1')
        self.stream_init()
        self.wait_flag(2)
        self.startup_loads(16384)
        if not self.noq:
            self.wait_flag(0, True)
        self.stamp(1)
        self.q_frags()
        self.tile(0, False, 48, 32)
        self.tile(1, False, 16, 0)
        A(f'v_lshlrev_b32 v{vT+4}, 4, v{vLANE}')
        A(f'v_mov_b32 v{vB}, v{vM}')
        A(f'v_mov_b32 v{vB+1}, v{vL}')
        A('s_nop 5')
        for j in range(8):
            A(f'ds_write_b128 v{vT+4}, {vr(vO + 4*j)} offset:{L_H + j*1024}')
        A(f'ds_write_b128 v{vT+4}, {vr(vB)} offset:{L_H + 8*1024}')
        self.set_flag(3)
        self.stamp(2)
        if self.notail:
            A('s_branch M_fin')
        if self.noq:
            self.wait_flag(0, True)
        A('s_cmp_ge_u32 s2, 224')
        A('s_cbranch_scc1 M_fin')
        A('s_barrier')
        if self.nogather:
            A('s_branch M_fin')
        self.gather(0, 4 if self.g44 else 3)
        self.set_flag(5)
        A('s_branch M_fin')

        self.L('M_w3')
        if self.notail:
            A('s_branch M_fin')
        A('s_cmp_ge_u32 s2, 224')
        A('s_cbranch_scc1 M_fin')
        if not self.wolate and not self.womid:
            self.wo_frags()
        self.wait_flag(0, True)
        if not self.wolate and self.womid:
            self.wait_flag(3)
            self.wo_frags()
        if not self.wolate:
            self.gemv_prep()
            self.reduce_prep()
        A('s_barrier')
        if self.wolate and not self.nowo:
            self.wo_frags()
        if self.nogather:
            A('s_branch M_fin')
        if self.wolate:
            self.gemv_prep()
            self.reduce_prep()
        self.stamp(3)
        if not self.g44:
            self.gather(6, 2)
        self.wait_flag(5, word2=6)
        self.stamp(4)
        self.gemv()
        self.stamp(2)
        self.reduce()
        A('s_branch M_fin')

        self.L('M_w2')
        if self.noprod:
            A('s_barrier')
            A('s_branch M_fin')
        A('s_setprio 3')
        A(f's_load_dword s{sG}, s[18:19], {WS_G}')
        if self.bar0 != 1:
            A('s_barrier')
        A(f's_and_b32 s{sU}, s2, 3')
        A(f's_cmp_lg_u32 s{sU}, 0')
        A('s_cbranch_scc1 M_noprod1')
        self.q_issue()
        self.L('M_noprod1')
        if self.bar0 == 1:
            A('s_barrier')
        self.q_tag()
        A(f's_getreg_b32 s{sSAME}, hwreg(HW_REG_XCC_ID, 0, 4)')
        A(f's_bfe_u32 s{sU+7}, s2, {(3 << 16) | 2}')
        A(f's_lshl_b32 s{sU+7}, s{sU+7}, 8')
        A(f's_add_u32 s{sU+7}, s{sU+7}, {WS_X}')
        A(f's_lshr_b32 s{sU+1}, s2, 5')
        A(f's_lshl_b32 s{sU+1}, s{sU+1}, 5')
        A(f's_and_b32 s{sU+2}, s2, 3')
        A(f's_lshl_b32 s{sU+2}, s{sU+2}, 3')
        A(f's_add_u32 s{sU+1}, s{sU+1}, s{sU+2}')
        A(f'v_mov_b32 v{vT+4}, s{sU+1}')
        A(f'v_mov_b32 v{vT+5}, s{sSAME}')
        A('s_mov_b64 exec, 1')
        A(f'buffer_store_dwordx2 {vr(vT+5, 2)}, v{vT+4}, {srd(sWS)}, s{sU+7} offen sc1')
        A('s_mov_b64 exec, -1')
        A(f's_and_b32 s{sU+1}, s2, 3')
        A(f's_cmp_lg_u32 s{sU+1}, 0')
        A('s_cbranch_scc1 M_noprod2')
        self.q_compute()
        self.L('M_noprod2')
        self.stamp(2)
        if self.nopoll:
            A('s_branch M_fin')
        self.q_gather()
        self.stamp(1)
        A('s_setprio 0')
        self.wait_flag(3)
        A(f'v_and_b32 v{vT}, 31, v{vLANE}')
        A(f'v_lshlrev_b32 v{vT}, 3, v{vT}')
        self.L('M_xpoll')
        A(f'buffer_load_dwordx2 {vr(vS, 2)}, v{vT}, {srd(sWS)}, s{sU+7} offen sc1')
        A('s_waitcnt vmcnt(0)')
        A(f'v_cmp_ne_u32 s[{sMG1}:{sMG1+1}], s{sSAME}, v{vS}')
        A(f'v_cmp_ne_u32 vcc, s{sTAG}, v{vS+1}')
        self.poll_tail('M_xpoll')
        A(f's_cmp_eq_u64 s[{sMG1}:{sMG1+1}], 0')
        A(f's_cselect_b32 s{sU+1}, {2 if self.l2 else 1}, 1')
        A(f'v_mov_b32 v{vT+1}, {L_FL + 28}')
        A(f'v_mov_b32 v{vT+2}, s{sU+1}')
        A(f'ds_write_b32 v{vT+1}, v{vT+2}')
        if self.notail:
            A('s_branch M_fin')
        A('s_cmp_ge_u32 s2, 224')
        A('s_cbranch_scc1 M_fin')
        A('s_barrier')
        if self.nogather:
            A('s_branch M_fin')
        self.gather(*((4, 4) if self.g44 else (3, 3)))
        self.set_flag(6)

        self.L('M_fin')
        if self.ts:
            self.stamp(5)
            A('s_memtime s[94:95]')
            A('s_waitcnt lgkmcnt(0)')
            A(f's_lshl_b32 s{sU}, s2, 3')
            A(f's_add_u32 s{sU}, s{sU}, s3')
            A(f's_lshl_b32 s{sU}, s{sU}, 6')
            A(f's_add_u32 s{sU}, s{sU}, {WS_T}')
            A(f'v_mov_b32 v{vT}, 0')
            A('s_mov_b64 exec, 1')
            if self.dbgt:
                A('s_mov_b64 s[4:5], s[16:17]')
                A('s_mov_b32 s6, 256')
                A('s_mov_b32 s7, 0x00020000')
                A(f's_not_b32 s{sU+1}, s{sTS}')
                A(f'v_mov_b32 v{vB}, s{sU+1}')
                A(f'v_mov_b32 v{vB+1}, s{sTS+10}')
                A(f'v_mov_b32 v{vB+2}, s{sTS+4}')
                A(f'v_mov_b32 v{vB+3}, s{sTS+2}')
                A(f'buffer_atomic_umax v{vB}, v{vT}, s[4:7], 0 offen')
                A(f'buffer_atomic_umax v{vB+1}, v{vT}, s[4:7], 0 offen offset:4')
                A('s_cmp_lg_u32 s3, 0')
                A('s_cbranch_scc1 M_nd')
                A(f'buffer_atomic_umax v{vB+2}, v{vT}, s[4:7], 0 offen offset:8')
                A(f'buffer_atomic_umax v{vB+3}, v{vT}, s[4:7], 0 offen offset:12')
                self.L('M_nd')
                A('s_waitcnt vmcnt(0)')
            for i in range(8):
                A(f'v_mov_b32 v{vB}, s{sTS + 2*i}')
                A(f'v_mov_b32 v{vB+1}, s{sTS + 2*i + 1}')
                A(f'buffer_store_dwordx2 {vr(vB, 2)}, v{vT}, {srd(sWS)}, s{sU} offen offset:{8*i}')
                A('s_nop 1')
        self.L('M_end')
        A('s_endpgm')

    def build(self):
        self.o = ['; GQA decode attention block (q-proj + flash-decoding + out-proj) in one launch; generated by bench/gen14.py',
                  f'; @launch grid=(256,1,1) block=(256,1,1) lds={LDS_SIZE}',
                  '.amdgcn_target "amdgcn-amd-amdhsa--gfx950"', '.text']
        self.main()
        self.o += ['.section .rodata,"a"', '.p2align 6',
                   f'.amdhsa_kernel {NAME}',
                   f'  .amdhsa_next_free_vgpr {NV + NA}',
                   '  .amdhsa_next_free_sgpr 100',
                   f'  .amdhsa_accum_offset {NV}',
                   '  .amdhsa_group_segment_fixed_size 0',
                   '  .amdhsa_kernarg_size 64',
                   '  .amdhsa_user_sgpr_count 2',
                   '  .amdhsa_user_sgpr_kernarg_segment_ptr 1',
                   '  .amdhsa_system_sgpr_workgroup_id_x 1',
                   '  .amdhsa_float_denorm_mode_32 3',
                   '.end_amdhsa_kernel']
        return '\n'.join(self.o) + '\n'


if __name__ == '__main__':
    kw = {}
    for a in sys.argv[2:]:
        k, v = a.split('=')
        kw[k] = int(v) if v.isdigit() else v.replace('+', ' ')
    open(sys.argv[1], 'w').write(Gen(**kw).build())
```

```python
import re
import sys

NAME = 'standalone__gqa_block_cached__sampling_kernel'

WS_G = 0
WS_Q = 0x1000
WS_X = 0x2c000
WS_C = 0x30000
WS_P = 0x40000
WS_ML = 0x140000
WS_Y = 0x180000
WS_T = 0x280000
WS_B = 0x300000
WS_SIZE = 0x330000

L_WQ = 0x6a00
L_H = 0x3800
L_o = 0x5c00
L_FL = 0x6500
L_Q = 0x6600
LDS_SIZE = 0x14a00

sK, sV, sWS, sX, sWQ, sWO, sOUT = 20, 24, 28, 32, 36, 40, 44
sTAG, sG, sC1, sSLO, sSHI, sKO, sVO, sT0, sT1, sCNT, sTO = 52, 53, 54, 55, 56, 57, 58, 59, 60, 61, 62
sMG1, sMG2, sCB = 64, 66, 68
sOWN, sISS, sTK, sGB = 48, 49, 50, 51
sSAME = 63
sU = 70
sTS = 80

vLANE, vKOFF, vVOFF, vM, vL, vMA, vMB = 0, 1, 2, 3, 4, 5, 6
vT = 7
vS = 16
vPA, vPB = 24, 28
vB = 32
vAL = 44
vC, vG_ = 46, 47
vV = (48, 112)
vO = 176
vPUB = 208
NV = 228
aK = (0, 64)
aQ = 128
NA = 160


def srd(n):
    return f's[{n}:{n+3}]'


def vr(n, k=4):
    return f'v[{n}:{n+k-1}]'


def ar(n, k=4):
    return f'a[{n}:{n+k-1}]'


class Gen:
    def __init__(self, **kw):
        self.o = []
        self.uid = 0
        self.pend = []
        d = dict(ts=0, timeout=1 << 18, kf=1, vf=0, sd=32, notail=0, noq=0, nowo=0, wolate=1, nocomp=0, noprod=0,
                 bar0=1, nopoll=0, pollstart=1, psleep=0, nogather=0, p2wait=0, qdelay=0, kpol='nt', vpol='nt', S=61, nset=1, stag=6, spec=16, g44=0, womid=0, remap=1, bper=4, l2=1, r2=1, rs=1, dbgt=0)
        for k in kw:
            assert k in d, k
        d.update(kw)
        self.__dict__.update(d)

    def A(self, s):
        if s.startswith('buffer_'):
            m = re.search(r'offset:(\d+)', s)
            assert not m or int(m.group(1)) < 4096, s
        self.o.append('    ' + s)

    def hstore(self, data, voff, soff, imm=0):
        o = f' offset:{imm}' if imm else ''
        self.A(f'buffer_store_dwordx4 {data}, {voff}, {srd(sWS)}, s{soff} offen{o}')
        self.pend.append((data, voff, soff, imm))

    def hflush(self, tmp):
        last = None
        for data, voff, soff, imm in self.pend:
            if soff != last:
                self.A(f's_add_u32 s{tmp}, s{soff}, {WS_B}')
                last = soff
            o = f' offset:{imm}' if imm else ''
            self.A(f'buffer_store_dwordx4 {data}, {voff}, {srd(sWS)}, s{tmp} offen{o} sc1')
        self.pend = []

    def L(self, s):
        self.o.append(s + ':')

    def lab(self, p):
        self.uid += 1
        return f'{p}_{self.uid}'

    def stamp(self, i):
        if self.ts:
            n = sTS + 2 * i
            self.A(f's_memrealtime s[{n}:{n+1}]')

    def prologue(self):
        A = self.A
        A('s_cmp_ge_u32 s2, 256')
        A('s_cbranch_scc1 M_end')
        A('s_load_dwordx16 s[4:19], s[0:1], 0')
        if self.remap:
            A(f's_and_b32 s{sU}, s2, 7')
            A(f's_lshl_b32 s{sU}, s{sU}, 2')
            A(f's_bfe_u32 s{sU+1}, s2, {(2 << 16) | 3}')
            A(f's_and_b32 s2, s2, 0xe0')
            A(f's_or_b32 s2, s2, s{sU}')
            A(f's_or_b32 s2, s2, s{sU+1}')
            if self.remap == 2:
                A(f's_cmp_eq_u32 s2, 37')
                A(f's_cselect_b32 s{sU}, 41, s2')
                A(f's_cmp_eq_u32 s2, 41')
                A(f's_cselect_b32 s2, 37, s{sU}')
        A(f'v_lshrrev_b32 v{vT}, 6, v0')
        A(f'v_and_b32 v{vLANE}, 63, v0')
        A(f'v_readfirstlane_b32 s3, v{vT}')
        A(f'v_mov_b32 v{vT+1}, {L_FL}')
        A(f'v_mov_b32 v{vS}, 0')
        A(f'v_mov_b32 v{vS+1}, 0')
        A(f'v_mov_b32 v{vS+2}, 0')
        A(f'v_mov_b32 v{vS+3}, 0')
        A(f'ds_write_b128 v{vT+1}, {vr(vS)}')
        A(f'ds_write_b128 v{vT+1}, {vr(vS)} offset:16')
        A(f'v_and_b32 v{vC}, 15, v{vLANE}')
        A(f'v_lshrrev_b32 v{vG_}, 4, v{vLANE}')
        A(f'v_lshlrev_b32 v{vKOFF}, 9, v{vC}')
        A(f'v_lshl_add_u32 v{vKOFF}, v{vG_}, 4, v{vKOFF}')
        A(f'v_lshlrev_b32 v{vVOFF}, 11, v{vG_}')
        A(f'v_lshl_add_u32 v{vVOFF}, v{vC}, 4, v{vVOFF}')
        A(f's_lshl_b32 s{sKO}, s2, 20')
        A(f's_lshl_b32 s{sT0}, s3, 15')
        A(f's_add_u32 s{sKO}, s{sKO}, s{sT0}')
        A(f's_mov_b32 s{sVO}, s{sKO}')
        for n, size in ((sK, 0x10000000), (sV, 0x10000000), (sWS, WS_SIZE), (sX, 8 * 448 * 2), (sWQ, 448 * 4096 * 2),
                        (sWO, 4096 * 448 * 2), (sOUT, 8 * 448 * 2)):
            A(f's_mov_b32 s{n+2}, {size:#x}')
            A(f's_mov_b32 s{n+3}, 0x00020000')
        A(f's_mov_b32 s{sTO}, {self.timeout}')
        A(f's_mov_b32 s{sC1}, 0x3db8aa3b')
        A(f's_mov_b32 s{sSLO}, 0x05040100')
        A(f's_mov_b32 s{sSHI}, 0x07060302')
        A('s_waitcnt lgkmcnt(0)')
        for n, p in ((sX, 4), (sWQ, 10), (sK, 6), (sV, 8), (sWS, 18), (sWO, 12), (sOUT, 14)):
            A(f's_mov_b64 s[{n}:{n+1}], s[{p}:{p+1}]')

    def masks(self):
        A = self.A
        A(f'v_and_b32 v{vT+1}, 1, v{vG_}')
        A(f'v_and_b32 v{vT+2}, 2, v{vG_}')
        A(f'v_cmp_ne_u32 s[{sMG1}:{sMG1+1}], 0, v{vT+1}')
        A(f'v_cmp_ne_u32 s[{sMG2}:{sMG2+1}], 0, v{vT+2}')

    def wait_flag(self, word, also_tag=False, word2=None):
        A = self.A
        lw, ok = self.lab('W'), self.lab('K')
        A(f'v_mov_b32 v{vT+1}, {L_FL}')
        A(f's_mov_b32 s{sU+5}, {self.timeout * 8}')
        self.L(lw)
        A(f'ds_read_b128 {vr(vB)}, v{vT+1} offset:{(word >> 2) * 16}')
        A(f's_sub_u32 s{sU+5}, s{sU+5}, 1')
        A(f's_cmp_eq_u32 s{sU+5}, 0')
        A('s_cbranch_scc1 M_end')
        A('s_waitcnt lgkmcnt(0)')
        A(f'v_readfirstlane_b32 s{sU+9}, v{vB+(word & 3)}')
        if also_tag:
            A(f'v_readfirstlane_b32 s{sTAG}, v{vB+1}')
        elif word2 is not None:
            A(f'v_readfirstlane_b32 s{sU+1}, v{vB+(word2 & 3)}')
            A('s_nop 0')
            A(f's_and_b32 s{sU+9}, s{sU+9}, s{sU+1}')
        else:
            A('s_nop 0')
        A(f's_cmp_lg_u32 s{sU+9}, 0')
        A(f's_cbranch_scc1 {ok}')
        A('s_sleep 1')
        A(f's_branch {lw}')
        self.L(ok)

    def set_flag(self, word):
        A = self.A
        A(f'v_mov_b32 v{vT+1}, {L_FL + 4*word}')
        A(f'v_mov_b32 v{vT+2}, 1')
        A(f'ds_write_b32 v{vT+1}, v{vT+2}')

    QX, QB = 48, 112

    def q_issue(self):
        A = self.A
        A(f's_bfe_u32 s{sU}, s2, {(3 << 16) | 2}')
        A(f's_lshl_b32 s{sU}, s{sU}, 3')
        A(f's_lshr_b32 s{sU+2}, s2, 5')
        A(f's_add_u32 s{sU}, s{sU}, s{sU+2}')
        A(f's_lshr_b32 s{sU+1}, s2, 2')
        A(f's_lshl_b32 s{sU+1}, s{sU+1}, 8')
        A(f's_add_u32 s{sU+1}, s{sU+1}, {WS_C}')
        A(f'v_mov_b32 v{vT+2}, 0')
        A('s_mov_b64 exec, 1')
        A(f'buffer_store_dword v{vT+2}, v{vT+2}, {srd(sWS)}, s{sU+1} offen sc1')
        A('s_mov_b64 exec, -1')
        A(f's_lshl_b32 s{sU+1}, s{sU}, 7')
        A(f'v_lshrrev_b32 v{vT}, 3, v{vLANE}')
        A(f'v_lshlrev_b32 v{vT}, 13, v{vT}')
        A(f'v_and_b32 v{vT+1}, 7, v{vLANE}')
        A(f'v_lshl_add_u32 v{vT}, v{vT+1}, 4, v{vT}')
        A(f'v_and_b32 v{vT+1}, 7, v{vC}')
        A(f'v_mul_u32_u24 v{vT+1}, 896, v{vT+1}')
        A(f'v_lshl_add_u32 v{vT+1}, v{vG_}, 4, v{vT+1}')
        for kt in range(14):
            A(f'buffer_load_dwordx4 {vr(self.QX + 4*kt)}, v{vT+1}, {srd(sX)}, 0 offen offset:{64*kt}')
        for n in range(56):
            A(f's_mov_b32 m0, {L_WQ + n*1024}')
            A(f's_add_u32 s{sU+3}, s{sU+1}, {n*65536}')
            A(f'buffer_load_dwordx4 v{vT}, {srd(sWQ)}, s{sU+3} offen nt lds')

    def q_tag(self):
        A = self.A
        A(f's_lshr_b32 s{sU+4}, s2, 2')
        A(f's_lshl_b32 s{sU+4}, s{sU+4}, 11')
        A(f's_add_u32 s{sU+4}, s{sU+4}, {WS_Q}')
        A(f'v_lshlrev_b32 v{vT}, 4, v{vLANE}')
        A(f'v_lshlrev_b32 v{vT+7}, 7, v{vG_}')
        A(f'v_bfe_u32 v{vT+4}, v{vC}, 2, 1')
        A(f'v_lshl_add_u32 v{vT+7}, v{vT+4}, 6, v{vT+7}')
        A(f'v_lshrrev_b32 v{vT+4}, 3, v{vC}')
        A(f'v_lshl_add_u32 v{vT+7}, v{vT+4}, 5, v{vT+7}')
        A(f'v_and_b32 v{vT+4}, 3, v{vC}')
        A(f'v_lshl_add_u32 v{vT+7}, v{vT+4}, 3, v{vT+7}')
        A(f'v_add_u32 v{vT+7}, {L_Q}, v{vT+7}')
        A('s_waitcnt lgkmcnt(0)')
        A(f's_add_u32 s{sG}, s{sG}, 1')
        A(f's_mul_i32 s{sTAG}, s{sG}, 0x9e3779b1')
        A(f's_xor_b32 s{sTAG}, s{sTAG}, 0x5bd1e995')
        A(f'v_mov_b32 v{vT+6}, s{sTAG}')

    def q_compute(self):
        A = self.A
        QX, QB = self.QX, self.QB
        DQ = vO
        A(f'v_lshrrev_b32 v{vT+2}, 2, v{vC}')
        A(f'v_lshl_add_u32 v{vT+2}, v{vG_}, 3, v{vT+2}')
        A(f'v_lshlrev_b32 v{vT+2}, 7, v{vT+2}')
        A(f'v_and_b32 v{vT+3}, 3, v{vC}')
        A(f'v_lshl_add_u32 v{vT+2}, v{vT+3}, 3, v{vT+2}')
        A(f'v_add_u32 v{vT+2}, {L_WQ}, v{vT+2}')
        A(f'v_and_b32 v{vT+3}, 7, v{vC}')
        A(f'v_lshlrev_b32 v{vT+3}, 14, v{vT+3}')
        A(f'v_lshrrev_b32 v{vT+4}, 3, v{vC}')
        A(f'v_cmp_ne_u32 s[{sMG1}:{sMG1+1}], 0, v{vT+4}')
        A(f'v_lshl_add_u32 v{vT+3}, v{vT+4}, 6, v{vT+3}')
        A(f'v_lshl_add_u32 v{vT+3}, v{vG_}, 4, v{vT+3}')
        A(f's_lshl_b32 s{sU+1}, s{sU}, 8')
        A(f's_add_u32 s{sU+1}, s{sU+1}, {WS_Q}')
        for q in range(4):
            A(f'v_mov_b32 v{vS + 2*q + 1}, s{sTAG}')

        def reads(kt):
            A(f's_waitcnt vmcnt({53 - 4*kt})')
            for ct in range(4):
                r = QB + (kt & 1)*16 + ct*4
                A(f'ds_read_b64_tr_b16 {vr(r, 2)}, v{vT+2} offset:{kt*4096 + ct*32}')
                A(f'ds_read_b64_tr_b16 {vr(r + 2, 2)}, v{vT+2} offset:{kt*4096 + ct*32 + 512}')
        reads(0)
        for kt in range(14):
            if kt < 13:
                reads(kt + 1)
                A('s_waitcnt lgkmcnt(8)')
            else:
                self.stamp(3)
                A('s_waitcnt lgkmcnt(0)')
            for ct in range(4):
                c = '0' if kt == 0 else vr(DQ + 4*ct)
                A(f'v_mfma_f32_16x16x32_bf16 {vr(DQ + 4*ct)}, {vr(QB + (kt & 1)*16 + 4*ct)}, {vr(QX + 4*kt)}, {c}')
        A('s_nop 7')
        for st in range(2):
            for r in range(4):
                A(f'v_cndmask_b32 v{vB + r}, v{DQ + 4*st + r}, v{DQ + 8 + 4*st + r}, s[{sMG1}:{sMG1+1}]')
            A(f'v_cvt_pk_bf16_f32 v{vS + 4*st}, v{vB}, v{vB+1}')
            A(f'v_cvt_pk_bf16_f32 v{vS + 4*st + 2}, v{vB+2}, v{vB+3}')
            self.hstore(vr(vS + 4*st), f'v{vT+3}', sU+1, 128*st)
        self.hflush(sU+2)

    def q_gather(self):
        A = self.A
        F = vV[0]
        if self.qdelay:
            self.wait_flag(2)
        A(f'v_mov_b32 v{vT+8}, {L_FL}')
        A(f'v_mov_b32 v{vT+5}, 1')
        self.L('M_qpoll')
        A(f's_and_b32 s{sU+1}, s{sTO}, {self.bper - 1}')
        A(f's_cmp_eq_u32 s{sU+1}, 1')
        A(f's_cselect_b32 s{sU+1}, {WS_B}, 0')
        A(f's_add_u32 s{sU+1}, s{sU+1}, s{sU+4}')
        for n in range(2):
            A(f'buffer_load_dwordx4 {vr(F + 4*n)}, v{vT}, {srd(sWS)}, s{sU+1} offen offset:{1024*n} sc1')
        A('s_waitcnt vmcnt(0)')
        for q in range(4):
            A(f'v_xor_b32 v{F + 2*q + 1}, s{sTAG}, v{F + 2*q + 1}')
        A(f'v_or3_b32 v{vT+2}, v{F+1}, v{F+3}, v{F+5}')
        A(f'v_or_b32 v{vT+2}, v{vT+2}, v{F+7}')
        A(f'v_cmp_ne_u32 vcc, 0, v{vT+2}')
        self.poll_tail('M_qpoll')
        A(f'ds_write2_b32 v{vT+7}, v{F}, v{F+2} offset0:0 offset1:1')
        A(f'ds_write2_b32 v{vT+7}, v{F+4}, v{F+6} offset0:128 offset1:129')
        A(f'ds_write_b64 v{vT+8}, {vr(vT+5, 2)}')

    def poll_tail(self, lab):
        A = self.A
        A(f's_sub_u32 s{sTO}, s{sTO}, 1')
        A(f's_cmp_eq_u32 s{sTO}, 0')
        A('s_cbranch_scc1 M_end')
        A(f's_cbranch_vccnz {lab}')

    def k_load(self, buf, j):
        so = f's{sT0}' if j >> 3 else f's{sKO}'
        self.A(f'buffer_load_dwordx4 {ar(aK[buf] + 4*j)}, v{vKOFF}, {srd(sK)}, {so} offen offset:{(j & 7)*64} {self.kpol}')

    def v_load(self, buf, half, i):
        so = f's{sT1}' if i >> 2 else f's{sVO}'
        self.A(f'buffer_load_dwordx4 {vr(vV[buf] + half*32 + 4*i)}, v{vVOFF}, {srd(sV)}, {so} offen '
               f'offset:{(i & 3)*512 + half*256} {self.vpol}')

    def k_issue(self, buf, step=16384):
        self.A(f's_add_u32 s{sT0}, s{sKO}, 8192')
        for j in range(16):
            self.k_load(buf, j)
        self.A(f's_add_u32 s{sKO}, s{sKO}, {step}')

    def v_issue(self, buf, step=16384):
        self.A(f's_add_u32 s{sT1}, s{sVO}, 8192')
        if self.vf:
            for half in range(2):
                for i in range(8):
                    self.v_load(buf, half, i)
        else:
            for i in range(8):
                for half in range(2):
                    self.v_load(buf, half, i)
        self.A(f's_add_u32 s{sVO}, s{sVO}, {step}')

    def xlane(self, t0, t1, op):
        A = self.A
        for ins in ('v_permlane16_swap_b32', 'v_permlane32_swap_b32'):
            A(f'v_mov_b32 v{t1}, v{t0}')
            A('s_nop 1')
            A(f'{ins} v{t0}, v{t1}')
            A('s_nop 0')
            A(f'{op} v{t0}, v{t0}, v{t1}')

    def tile(self, buf, refill, wk, wv):
        A0 = self.A
        def A(x):
            if self.nocomp and (x.startswith('v_') or x.startswith('s_nop')):
                return
            A0(x)
        A(f's_waitcnt vmcnt({wk})')
        kf = self.kf and refill
        if kf:
            A(f's_add_u32 s{sT0}, s{sKO}, 8192')
        for j in range(16):
            T, s = j >> 3, j & 7
            c = '0' if s == 0 else vr(vS + 4*T)
            A(f'v_mfma_f32_16x16x32_bf16 {vr(vS + 4*T)}, {ar(aK[buf] + 4*j)}, {ar(aQ + 4*s)}, {c}')
            if kf:
                self.k_load(buf, j)
        if kf:
            A(f's_add_u32 s{sKO}, s{sKO}, 16384')
            A('s_nop 5')
        elif refill:
            self.k_issue(buf)
        else:
            A('s_nop 6')
        t0, t1, t2, al = vT, vT + 1, vT + 2, vT + 3
        if self.rs:
            for u in range(4):
                A(f'v_cvt_pk_bf16_f32 v{vPA+u}, v{vS+2*u}, v{vS+2*u+1}')
            for u in range(4):
                A(f'v_lshlrev_b32 v{vS+2*u}, 16, v{vPA+u}')
                A(f'v_and_b32 v{vS+2*u+1}, 0xffff0000, v{vPA+u}')
        A(f'v_max3_f32 v{t0}, v{vS}, v{vS+1}, v{vS+2}')
        A(f'v_max3_f32 v{t0}, v{t0}, v{vS+3}, v{vS+4}')
        A(f'v_max3_f32 v{t0}, v{t0}, v{vS+5}, v{vS+6}')
        A(f'v_max_f32 v{t0}, v{t0}, v{vS+7}')
        self.xlane(t0, t1, 'v_max_f32')
        A(f'v_mul_f32 v{t0}, s{sC1}, v{t0}')
        A(f'v_max_f32 v{t0}, v{vM}, v{t0}')
        A(f'v_sub_f32 v{t1}, v{vM}, v{t0}')
        A(f'v_exp_f32 v{al}, v{t1}')
        A(f'v_mov_b32 v{vM}, v{t0}')
        for e in range(8):
            A(f'v_fma_f32 v{vS+e}, v{vS+e}, s{sC1}, -v{t0}')
        for e in range(8):
            A(f'v_exp_f32 v{vS+e}, v{vS+e}')
        A(f'v_mov_b32_dpp v{vAL}, v{al} quad_perm:[0,0,2,2] row_mask:0xf bank_mask:0xf')
        A(f'v_mov_b32_dpp v{vAL+1}, v{al} quad_perm:[1,1,3,3] row_mask:0xf bank_mask:0xf')
        for u in range(4):
            A(f'v_cvt_pk_bf16_f32 v{vPB+u}, v{vS+2*u}, v{vS+2*u+1}')
        A(f'v_add_f32 v{t1}, v{vS}, v{vS+1}')
        A(f'v_add_f32 v{t2}, v{vS+2}, v{vS+3}')
        A(f'v_add_f32 v{t0}, v{vS+4}, v{vS+5}')
        A(f'v_add_f32 v{t1}, v{t1}, v{t2}')
        A(f'v_add_f32 v{t2}, v{vS+6}, v{vS+7}')
        A(f'v_add_f32 v{t0}, v{t0}, v{t2}')
        A(f'v_add_f32 v{t1}, v{t1}, v{t0}')
        A(f'v_fma_f32 v{vL}, v{vL}, v{al}, v{t1}')
        for u in range(4):
            A(f'v_and_b32 v{vPA+u}, v{vMA}, v{vPB+u}')
            A(f'v_and_b32 v{vPB+u}, v{vMB}, v{vPB+u}')
        for j in range(16):
            A(f'v_pk_mul_f32 {vr(vO + 2*j, 2)}, {vr(vO + 2*j, 2)}, {vr(vAL, 2)}')
        A(f's_waitcnt vmcnt({wv})')
        vf = self.vf and refill
        if vf:
            A(f's_add_u32 s{sT1}, s{sVO}, 8192')
        for half in range(2):
            P = vPB if half else vPA

            def perms(j):
                b = vB + 4 * (j % 3)
                t = j >> 1
                sel = sSHI if j & 1 else sSLO
                for u in range(4):
                    lo = vV[buf] + half*32 + 4*(2*u) + t
                    hi = vV[buf] + half*32 + 4*(2*u + 1) + t
                    A(f'v_perm_b32 v{b+u}, v{hi}, v{lo}, s{sel}')

            perms(0)
            for j in range(8):
                if j < 7:
                    perms(j + 1)
                else:
                    A('s_nop 1')
                A(f'v_mfma_f32_16x16x32_bf16 {vr(vO + 4*j)}, {vr(P)}, {vr(vB + 4*(j % 3))}, {vr(vO + 4*j)}')
            if vf:
                for i in range(8):
                    self.v_load(buf, half, i)
        if vf:
            A(f's_add_u32 s{sVO}, s{sVO}, 16384')
        elif refill:
            self.v_issue(buf)

    def stream_init(self):
        A = self.A
        A(f'v_mov_b32 v{vM}, 0xff7fffff')
        A(f'v_mov_b32 v{vL}, 0')
        A(f'v_and_b32 v{vT}, 2, v{vC}')
        A(f'v_cmp_eq_u32 vcc, 0, v{vT}')
        self.masks()
        A(f'v_cndmask_b32 v{vMA}, 0, -1, vcc')
        A(f'v_not_b32 v{vMB}, v{vMA}')
        for j in range(32):
            A(f'v_mov_b32 v{vO+j}, 0')

    def q_frags(self):
        A = self.A
        A(f'v_and_b32 v{vT}, 1, v{vC}')
        A(f'v_lshlrev_b32 v{vT}, 9, v{vT}')
        A(f'v_lshl_add_u32 v{vT}, v{vG_}, 4, v{vT}')
        for s in range(8):
            A(f'ds_read_b128 {ar(aQ + 4*s)}, v{vT} offset:{L_Q + 64*s}')
        A('s_waitcnt lgkmcnt(0)')

    def startup_loads(self, second_step, bar=False):
        A = self.A
        sd = self.sd
        self.k_issue(0)
        if sd < 32:
            A(f's_waitcnt vmcnt({sd - 16})')
        self.v_issue(0)
        if bar:
            A('s_barrier')
        if sd < 48:
            A(f's_waitcnt vmcnt({sd - 16})')
        self.stamp(4)
        self.k_issue(1, second_step)
        if sd < 64:
            A(f's_waitcnt vmcnt({sd - 16})')
        self.v_issue(1, second_step)

    def wo_frags(self):
        A = self.A
        R = vV[0]
        A(f's_and_b32 s{sU+6}, s2, 31')
        A(f's_mul_i32 s{sU+6}, s{sU+6}, {128*896}')
        A(f's_lshr_b32 s{sU+1}, s2, 5')
        A(f's_lshl_b32 s{sU+1}, s{sU+1}, 7')
        A(f's_add_u32 s{sU+6}, s{sU+6}, s{sU+1}')
        A(f'v_mul_u32_u24 v{vT+8}, 7168, v{vG_}')
        A(f'v_lshl_add_u32 v{vT+8}, v{vC}, 3, v{vT+8}')
        for ks in range(4):
            for i in range(8):
                if (i & 3) == 0:
                    A(f's_add_u32 s{sU+1}, s{sU+6}, {ks*32*896 + (i >> 2)*3584}')
                A(f'buffer_load_dwordx2 {vr(R + ks*16 + 2*i, 2)}, v{vT+8}, {srd(sWO)}, s{sU+1} offen offset:{(i & 3)*896} nt')
        for ks in range(4):
            A(f's_waitcnt vmcnt({24 - 8*ks})')
            for t in range(2):
                for u in range(4):
                    lo = R + ks*16 + 2*(2*u) + t
                    hi = R + ks*16 + 2*(2*u+1) + t
                    A(f'v_perm_b32 v{vS + (2*t)*4 + u}, v{hi}, v{lo}, s{sSLO}')
                    A(f'v_perm_b32 v{vS + (2*t+1)*4 + u}, v{hi}, v{lo}, s{sSHI}')
            for q in range(16):
                A(f'v_accvgpr_write_b32 a{ks*16 + q}, v{vS + q}')

    def gather(self, b0, n):
        A = self.A
        D = vV[0]
        ML = vO
        ns = 4 * n
        ALL = (1 << ns) - 1
        sD, sM, sDone, sGot, sRdy, sNeed = sU + 2, sU + 3, sU + 4, sKO, sVO, sT0
        sW = 96
        sRnd, sD2 = 12, 13
        sW2 = 4
        A(f's_and_b32 s{sU}, s2, 28')
        A(f's_add_u32 s{sU}, s{sU}, {b0*32}')
        A(f's_and_b32 s{sU+1}, s2, 3')
        A(f's_lshl_b32 s{sD}, s{sU}, 12')
        A(f's_and_b32 s{sU+6}, s{sU+1}, 1')
        A(f's_lshl_b32 s{sU+6}, s{sU+6}, 9')
        A(f's_add_u32 s{sD}, s{sD}, s{sU+6}')
        A(f's_lshr_b32 s{sU+6}, s{sU+1}, 1')
        A(f's_lshl_b32 s{sU+6}, s{sU+6}, 8')
        A(f's_add_u32 s{sD}, s{sD}, s{sU+6}')
        A(f's_add_u32 s{sD}, s{sD}, {WS_P}')
        A(f's_lshl_b32 s{sM}, s{sU}, 7')
        A(f's_lshr_b32 s{sU+1}, s{sU+1}, 1')
        A(f's_lshl_b32 s{sU+1}, s{sU+1}, 4')
        A(f's_add_u32 s{sM}, s{sM}, s{sU+1}')
        A(f's_add_u32 s{sM}, s{sM}, {WS_ML}')
        A(f'v_lshlrev_b32 v{vT+7}, 10, v{vG_}')
        A(f'v_lshl_add_u32 v{vT+7}, v{vC}, 4, v{vT+7}')
        A(f'v_min_u32 v{vT+8}, {ns-1}, v{vC}')
        A(f'v_lshrrev_b32 v{vT+6}, 2, v{vT+8}')
        A(f'v_lshlrev_b32 v{vT+6}, 12, v{vT+6}')
        A(f'v_and_b32 v{vT+8}, 3, v{vT+8}')
        A(f'v_lshl_add_u32 v{vT+8}, v{vT+8}, 7, v{vT+6}')
        A(f'v_lshlrev_b32 v{vT+6}, 4, v{vC}')
        A(f'v_lshl_add_u32 v{vT+6}, v{vG_}, 2, v{vT+6}')
        A(f's_not_b32 s{sU+1}, s{sTAG}')
        for src in range(ns):
            A(f'v_mov_b32 v{D + 4*src + 1}, s{sU+1}')
        A(f'v_mov_b32 v{ML}, 0')
        A(f'v_mov_b32 v{ML+1}, s{sU+1}')
        A(f'v_mov_b32 v{ML+2}, 1.0')
        A(f'v_mov_b32 v{ML+3}, s{sU+1}')
        A(f's_mov_b32 s{sDone}, 0')
        A(f's_mov_b32 s{sGot}, 0')
        A(f's_mov_b32 s{sRdy}, 0')
        if self.pollstart:
            self.wait_flag(4)
        top = self.lab('G')
        if self.ts and b0 < 6:
            self.stamp(3)
            A(f's_mov_b32 s{sCNT}, 0')
        self.L(top)
        if self.ts and b0 < 6:
            A(f's_add_u32 s{sCNT}, s{sCNT}, 1')
            A(f's_mov_b32 s{sTS+8}, s{sCNT}')
            A(f's_mov_b32 s{sTS+9}, 0')
        A(f's_andn2_b32 s{sU+1}, {ALL}, s{sRdy}')
        A(f's_mov_b32 exec_lo, s{sU+1}')
        A('s_mov_b32 exec_hi, 0')
        A(f'buffer_load_dwordx4 {vr(ML)}, v{vT+8}, {srd(sWS)}, s{sM} offen sc1')
        A('s_mov_b64 exec, -1')
        A(f's_bcnt1_i32_b32 s{sU+1}, s{sU+1}')
        A(f's_cmp_le_u32 s{sU+1}, {self.spec}')
        A(f's_cselect_b32 s{sNeed}, {ALL}, s{sRdy}')
        A(f's_andn2_b32 s{sNeed}, s{sNeed}, s{sGot}')
        for k in range(n):
            sk = self.lab('GS')
            A(f's_bfe_u32 s{sU+1}, s{sNeed}, {(4 << 16) | (4*k)}')
            A(f's_cbranch_scc0 {sk}')
            for sp in range(4):
                src = 4*k + sp
                A(f's_bitcmp1_b32 s{sNeed}, {src}')
                A('s_cselect_b64 exec, -1, 0')
                A(f's_add_u32 s{sU+1}, s{sD}, {k*32*4096 + sp*4096}')
                A(f'buffer_load_dwordx4 {vr(D + 4*src)}, v{vT+7}, {srd(sWS)}, s{sU+1} offen sc1')
            A('s_mov_b64 exec, -1')
            self.L(sk)
        A('s_waitcnt vmcnt(0)')
        A(f'v_xor_b32 v{vT+2}, s{sTAG}, v{ML+1}')
        A(f'v_xor_b32 v{vT+3}, s{sTAG}, v{ML+3}')
        A(f'v_or_b32 v{vT+2}, v{vT+2}, v{vT+3}')
        A(f'v_cmp_eq_u32 vcc, 0, v{vT+2}')
        A(f'v_max_f32_dpp v{vT+2}, v{ML}, v{ML} quad_perm:[1,0,3,2] row_mask:0xf bank_mask:0xf')
        A(f's_and_b32 s{sRdy}, vcc_lo, {ALL}')
        A('s_nop 0')
        A(f'v_max_f32_dpp v{vT+2}, v{vT+2}, v{vT+2} quad_perm:[2,3,0,1] row_mask:0xf bank_mask:0xf')
        A(f'v_sub_f32 v{vT+2}, v{ML}, v{vT+2}')
        A(f'v_exp_f32 v{vT+2}, v{vT+2}')
        A('s_nop 0')
        A(f'v_mul_f32 v{vT+3}, v{vT+2}, v{ML+2}')
        A('s_nop 1')
        A(f'v_add_f32_dpp v{vT+3}, v{vT+3}, v{vT+3} quad_perm:[1,0,3,2] row_mask:0xf bank_mask:0xf')
        A('s_nop 1')
        A(f'v_add_f32_dpp v{vT+3}, v{vT+3}, v{vT+3} quad_perm:[2,3,0,1] row_mask:0xf bank_mask:0xf')
        A(f'v_rcp_f32 v{vT+3}, v{vT+3}')
        A('s_nop 0')
        A(f'v_mul_f32 v{vT+5}, v{vT+2}, v{vT+3}')
        for k in range(n):
            sk = self.lab('GB')
            d = D + 16*k
            A(f's_bitcmp1_b32 s{sDone}, {k}')
            A(f's_cbranch_scc1 {sk}')
            for sp in range(4):
                A(f'v_xor_b32 v{vB+2*sp}, s{sTAG}, v{d+4*sp+1}')
                A(f'v_xor_b32 v{vB+2*sp+1}, s{sTAG}, v{d+4*sp+3}')
            for sp in range(4):
                A(f'v_or_b32 v{vB+2*sp}, v{vB+2*sp}, v{vB+2*sp+1}')
            for sp in range(4):
                A(f'v_cmp_ne_u32 s[{sW2+2*sp}:{sW2+2*sp+1}], 0, v{vB+2*sp}')
            for sp in range(4):
                A(f'v_readlane_b32 s{sW+sp}, v{vT+5}, {4*k + sp}')
            for sp in range(4):
                A(f's_cmp_eq_u64 s[{sW2+2*sp}:{sW2+2*sp+1}], 0')
                A(f's_cselect_b32 s{sU+1}, {1 << (4*k + sp)}, 0')
                A(f's_or_b32 s{sGot}, s{sGot}, s{sU+1}')
            A(f'v_mul_f32 v{vT+3}, s{sW}, v{d}')
            A(f'v_mul_f32 v{vT+4}, s{sW}, v{d+2}')
            A(f's_and_b32 s{sU+1}, s{sGot}, s{sRdy}')
            A(f's_bfe_u32 s{sU+1}, s{sU+1}, {(4 << 16) | (4*k)}')
            A(f's_cmp_lg_u32 s{sU+1}, 15')
            A(f's_cbranch_scc1 {sk}')
            for sp in range(1, 4):
                A(f'v_fmac_f32 v{vT+3}, s{sW+sp}, v{d+4*sp}')
                A(f'v_fmac_f32 v{vT+4}, s{sW+sp}, v{d+4*sp+2}')
            A(f'v_cvt_pk_bf16_f32 v{vT+3}, v{vT+3}, v{vT+4}')
            A(f'ds_write_b32 v{vT+6}, v{vT+3} offset:{L_o + (b0 + k)*272}')
            A(f's_bitset1_b32 s{sDone}, {k}')
            self.L(sk)
        A(f's_sub_u32 s{sTO}, s{sTO}, 1')
        A(f's_cmp_eq_u32 s{sTO}, 0')
        A('s_cbranch_scc1 M_end')
        A(f's_cmp_lg_u32 s{sDone}, {(1 << n) - 1}')
        A(f's_cbranch_scc1 {top}')

    def gemv_prep(self):
        A = self.A
        self.masks()
        A(f'v_and_b32 v{vAL}, 7, v{vC}')
        A(f'v_mul_u32_u24 v{vAL}, 272, v{vAL}')
        A(f'v_lshl_add_u32 v{vAL}, v{vG_}, 4, v{vAL}')
        A(f'v_lshlrev_b32 v{vAL+1}, 4, v{vLANE}')
        A(f's_lshl_b32 s{sU+7}, s2, 12')
        A(f's_add_u32 s{sU+7}, s{sU+7}, {WS_Y}')
        for q in range(8):
            A(f'v_mov_b32 v{vV[1] + 2*q + 1}, s{sTAG}')

    def gemv(self):
        A = self.A
        AF = vO
        Y = vO + 16
        P = vV[1]
        for ks in range(4):
            A(f'ds_read_b128 {vr(AF + 4*ks)}, v{vAL} offset:{L_o + 64*ks}')
        for ks in range(4):
            A(f's_waitcnt lgkmcnt({3-ks})')
            for jj in range(4):
                y = Y + 4*jj
                c = '0' if ks == 0 else vr(y)
                A(f'v_mfma_f32_16x16x32_bf16 {vr(y)}, {vr(AF + 4*ks)}, {ar(ks*16 + jj*4)}, {c}')
        A('s_nop 4')
        for jj in range(4):
            for rr in range(2):
                A(f'v_cndmask_b32 v{P + rr*8 + 2*jj}, v{Y + 4*jj + rr}, v{Y + 4*jj + 2 + rr}, s[{sMG2}:{sMG2+1}]')
            if jj & 1:
                for rr in range(2):
                    A(f'buffer_store_dwordx4 {vr(P + rr*8 + 2*(jj-1))}, v{vAL+1}, {srd(sWS)}, s{sU+7} offen offset:{(rr*2 + (jj >> 1))*1024} sc1')

    SO = (sOWN, sISS, sTK, sCNT, 12, 13, 14, 15)

    def reduce_prep(self):
        A = self.A
        R = vPUB
        SO = self.SO
        A(f's_lshr_b32 s{sU+1}, s2, 5')
        A(f's_lshl_b32 s{sGB}, s{sU+1}, 7')
        A(f's_lshl_b32 s{SO[0]}, s{sU+1}, 17')
        A(f's_and_b32 s{sU+1}, s2, 31')
        A(f's_lshl_b32 s{sU+6}, s{sU+1}, 7')
        A(f's_add_u32 s{SO[0]}, s{SO[0]}, s{sU+6}')
        A(f's_add_u32 s{SO[0]}, s{SO[0]}, {WS_Y}')
        for n in range(1, 8):
            A(f's_add_u32 s{SO[n]}, s{SO[0]}, {n*16384}')
        A(f'v_lshlrev_b32 v{R}, 12, v{vG_}')
        A(f'v_lshl_add_u32 v{R}, v{vC}, 3, v{R}')
        for bit, mul in ((4, 896), (3, 4), (2, 2*896), (1, 4*896), (0, 64)):
            A(f's_bitcmp1_b32 s{sU+1}, {bit}')
            A(f's_cselect_b32 s{sU+6}, {mul}, 0')
            A(f's_add_u32 s{sGB}, s{sGB}, s{sU+6}')
        A(f'v_lshrrev_b32 v{R+1}, 1, v{vC}')
        A(f'v_lshlrev_b32 v{R+1}, 3, v{R+1}')
        A(f'v_and_b32 v{R+2}, 1, v{vC}')
        A(f'v_lshl_add_u32 v{R+1}, v{R+2}, 1, v{R+1}')
        A(f's_load_dword s{sG}, s[18:19], {WS_G}')
        A('s_waitcnt lgkmcnt(0)')

    def reduce(self):
        A = self.A
        R = vPUB
        E = vV[0]
        ns = self.nset

        if self.r2:
            sDn, sC = sKO, 4
            A(f's_not_b32 s{sU+1}, s{sTAG}')
            for n in range(8):
                A(f'v_mov_b32 v{E + 2*n + 1}, s{sU+1}')
            A(f's_mov_b32 s{sDn}, 0')
            self.L('M_p2')
            for n in range(8):
                so = self.SO[n]
                A(f's_bitcmp0_b32 s{sDn}, {n}')
                A('s_cselect_b64 exec, -1, 0')
                A(f'buffer_load_dwordx2 {vr(E + 2*n, 2)}, v{R}, {srd(sWS)}, s{so} offen sc1')
            A('s_mov_b64 exec, -1')
            A(f's_sub_u32 s{sTO}, s{sTO}, 1')
            A(f's_cmp_eq_u32 s{sTO}, 0')
            A('s_cbranch_scc1 M_end')
            A('s_waitcnt vmcnt(0)')
            for q in range(8):
                A(f'v_xor_b32 v{vB + q}, s{sTAG}, v{E + 2*q + 1}')
            A(f'v_or3_b32 v{vT+2}, v{vB}, v{vB+1}, v{vB+2}')
            A(f'v_or3_b32 v{vT+3}, v{vB+3}, v{vB+4}, v{vB+5}')
            A(f'v_or3_b32 v{vT+2}, v{vT+2}, v{vB+6}, v{vB+7}')
            A(f'v_or_b32 v{vT+2}, v{vT+2}, v{vT+3}')
            A(f'v_cmp_ne_u32 vcc, 0, v{vT+2}')
            A(f'v_add_f32 v{vS}, v{E}, v{E+2}')
            A(f'v_add_f32 v{vS+1}, v{E+4}, v{E+6}')
            A(f'v_add_f32 v{vS+2}, v{E+8}, v{E+10}')
            A(f'v_add_f32 v{vS+3}, v{E+12}, v{E+14}')
            A(f'v_add_f32 v{vS}, v{vS}, v{vS+1}')
            A(f'v_add_f32 v{vS+2}, v{vS+2}, v{vS+3}')
            A(f'v_add_f32 v{vT+4}, v{vS}, v{vS+2}')
            A('s_cbranch_vccz M_p2ok')
            for h in range(2):
                for q in range(4):
                    A(f'v_cmp_ne_u32 s[{sC+2*q}:{sC+2*q+1}], 0, v{vB + 4*h + q}')
                A('s_nop 0')
                for q in range(4):
                    A(f's_cmp_eq_u64 s[{sC+2*q}:{sC+2*q+1}], 0')
                    A(f's_cselect_b32 s{sU+1}, {1 << (4*h + q)}, 0')
                    A(f's_or_b32 s{sDn}, s{sDn}, s{sU+1}')
            A('s_branch M_p2')
        else:
            def issue(i):
                for n in range(8):
                    so = self.SO[n]
                    A(f'buffer_load_dwordx2 {vr(E + 16*i + 2*n, 2)}, v{R}, {srd(sWS)}, s{so} offen sc1')
            for i in range(ns):
                issue(i)
                if i < ns - 1:
                    A(f's_sleep {self.stag}')
            self.L('M_p2')
            for i in range(ns):
                e = E + 16*i
                A(f's_waitcnt vmcnt({8*(ns-1)})')
                for q in range(8):
                    A(f'v_xor_b32 v{e + 2*q + 1}, s{sTAG}, v{e + 2*q + 1}')
                A(f'v_or3_b32 v{vT+2}, v{e+1}, v{e+3}, v{e+5}')
                A(f'v_or3_b32 v{vT+3}, v{e+7}, v{e+9}, v{e+11}')
                A(f'v_or3_b32 v{vT+2}, v{vT+2}, v{e+13}, v{e+15}')
                A(f'v_or_b32 v{vT+2}, v{vT+2}, v{vT+3}')
                A(f'v_cmp_ne_u32 vcc, 0, v{vT+2}')
                for st in (1, 2, 4):
                    for q in range(0, 8, 2*st):
                        dst = vT + 4 if st == 4 else e + 2*q
                        A(f'v_add_f32 v{dst}, v{e + 2*q}, v{e + 2*(q+st)}')
                A('s_cbranch_vccz M_p2ok')
                issue(i)
            A(f's_sub_u32 s{sTO}, s{sTO}, 1')
            A(f's_cmp_lg_u32 s{sTO}, 0')
            A('s_cbranch_scc1 M_p2')
            A('s_branch M_end')
        self.L('M_p2ok')
        self.xlane(vT + 4, vT + 5, 'v_add_f32')
        A(f'v_cvt_pk_bf16_f32 v{vT+2}, v{vT+4}, v{vT+4}')
        A('s_mov_b64 exec, 0xffff')
        A(f'buffer_store_short v{vT+2}, v{R+1}, {srd(sOUT)}, s{sGB} offen')
        A('s_mov_b64 exec, 1')
        A('s_cmp_lg_u32 s2, 0')
        A('s_cbranch_scc1 M_nogen')
        A(f'v_mov_b32 v{vT+7}, 0')
        A(f's_add_u32 s{sG}, s{sG}, 1')
        A(f'v_mov_b32 v{vT+8}, s{sG}')
        A(f'buffer_store_dword v{vT+8}, v{vT+7}, {srd(sWS)}, 0 offen offset:{WS_G} sc1')
        self.L('M_nogen')
        A('s_mov_b64 exec, -1')

    def main(self):
        A = self.A
        self.o += ['.globl ' + NAME, '.p2align 8', f'.type {NAME},@function', NAME + ':']
        self.stamp(0)
        if self.ts:
            A('s_memtime s[92:93]')
            for i in range(1, 6):
                A(f's_mov_b64 s[{sTS+2*i}:{sTS+2*i+1}], 0')
        self.prologue()
        A('s_cmp_eq_u32 s3, 2')
        A('s_cbranch_scc1 M_w2')
        if self.bar0 == 2:
            A('s_cmp_eq_u32 s3, 0')
            A('s_cbranch_scc1 M_w0')
        A('s_barrier')
        A('s_cmp_eq_u32 s3, 1')
        A('s_cbranch_scc1 M_w1')
        A('s_cmp_eq_u32 s3, 3')
        A('s_cbranch_scc1 M_w3')

        self.L('M_w0')
        self.startup_loads(16384 * 3, self.bar0 == 2)
        self.stream_init()
        A(f's_waitcnt vmcnt({max(self.sd - 16, 0)})')
        self.set_flag(2)
        self.stamp(3)
        if not self.noq:
            self.wait_flag(0, True)
        self.stamp(1)
        self.q_frags()
        S = self.S
        P = (64 - S) * 4
        PUB = vPUB
        for q in range(10):
            A(f'v_mov_b32 v{PUB + 2*q + 1}, s{sTAG}')
        A(f'v_lshlrev_b32 v{vT+8}, 4, v{vLANE}')
        A(f's_mov_b32 s{sOWN}, s{sKO}')
        A(f's_mov_b32 s{sISS}, 4')
        A(f's_lshr_b32 s{sU}, s2, 2')
        A(f's_lshl_b32 s{sGB}, s{sU}, 22')
        A(f's_add_u32 s{sGB}, s{sGB}, {S * 16384}')
        A(f's_lshl_b32 s{sU}, s{sU}, 8')
        A(f's_add_u32 s{sU}, s{sU}, {WS_C}')
        A(f's_add_u32 s{sCB}, s18, s{sU}')
        A(f's_addc_u32 s{sCB+1}, s19, 0')
        A(f's_mov_b32 s{sTK}, {P}')

        def ticket():
            if P:
                A(f's_mov_b32 s{sTK}, 1')
                A(f's_atomic_add s{sTK}, s[{sCB}:{sCB+1}], 0 glc')

        def next_tile(buf):
            st, jn = self.lab('NS'), self.lab('NJ')
            A(f's_cmp_lt_u32 s{sISS}, {S}')
            A(f's_cbranch_scc1 {st}')
            A('s_waitcnt lgkmcnt(0)')
            A(f's_cmp_ge_u32 s{sTK}, {P}')
            A(f's_cbranch_scc1 M_drain{buf}')
            A(f's_and_b32 s{sU}, s{sTK}, 3')
            A(f's_lshl_b32 s{sU}, s{sU}, 20')
            A(f's_lshr_b32 s{sU+1}, s{sTK}, 2')
            A(f's_lshl_b32 s{sU+1}, s{sU+1}, 14')
            A(f's_add_u32 s{sKO}, s{sGB}, s{sU}')
            A(f's_add_u32 s{sKO}, s{sKO}, s{sU+1}')
            ticket()
            A(f's_branch {jn}')
            self.L(st)
            A(f's_mov_b32 s{sKO}, s{sOWN}')
            A(f's_add_u32 s{sOWN}, s{sOWN}, 16384')
            A(f's_add_u32 s{sISS}, s{sISS}, 1')
            if buf == 0:
                A(f's_cmp_eq_u32 s{sISS}, 41')
                A('s_cbranch_scc1 M_merge')
                self.L('M_merged')
            A(f's_cmp_lg_u32 s{sISS}, {S}')
            A(f's_cbranch_scc1 {jn}')
            ticket()
            self.L(jn)
            A(f's_mov_b32 s{sVO}, s{sKO}')

        self.L('M_loop')
        next_tile(0)
        self.tile(0, True, 48, 48)
        next_tile(1)
        self.tile(1, True, 48, 48)
        A('s_branch M_loop')

        self.L('M_merge')
        self.wait_flag(7)
        A(f's_mov_b32 s{sSAME}, s{sU+9}')
        self.wait_flag(3)
        A(f'v_lshlrev_b32 v{vT+4}, 4, v{vLANE}')
        A(f'ds_read_b128 {vr(vB)}, v{vT+4} offset:{L_H + 8*1024}')
        A('s_waitcnt lgkmcnt(0)')
        A(f'v_max_f32 v{vT}, v{vM}, v{vB}')
        A(f'v_sub_f32 v{vT+1}, v{vM}, v{vT}')
        A(f'v_sub_f32 v{vT+2}, v{vB}, v{vT}')
        A(f'v_exp_f32 v{vT+1}, v{vT+1}')
        A(f'v_exp_f32 v{vT+2}, v{vT+2}')
        A(f'v_mov_b32 v{vM}, v{vT}')
        A('s_nop 0')
        A(f'v_mul_f32 v{vL}, v{vL}, v{vT+1}')
        A(f'v_fmac_f32 v{vL}, v{vB+1}, v{vT+2}')
        A(f'v_mov_b32_dpp v{vAL}, v{vT+1} quad_perm:[0,0,2,2] row_mask:0xf bank_mask:0xf')
        A(f'v_mov_b32_dpp v{vAL+1}, v{vT+1} quad_perm:[1,1,3,3] row_mask:0xf bank_mask:0xf')
        A(f'v_mov_b32_dpp v{vT+5}, v{vT+2} quad_perm:[0,0,2,2] row_mask:0xf bank_mask:0xf')
        A(f'v_mov_b32_dpp v{vT+6}, v{vT+2} quad_perm:[1,1,3,3] row_mask:0xf bank_mask:0xf')
        for half in range(2):
            for j in range(4):
                A(f'ds_read_b128 {vr(vS + 4*j)}, v{vT+4} offset:{L_H + (half*4 + j)*1024}')
            for j in range(8):
                A(f'v_pk_mul_f32 {vr(vO + half*16 + 2*j, 2)}, {vr(vO + half*16 + 2*j, 2)}, {vr(vAL, 2)}')
            A('s_waitcnt lgkmcnt(0)')
            for j in range(8):
                A(f'v_pk_fma_f32 {vr(vO + half*16 + 2*j, 2)}, {vr(vS + 2*j, 2)}, {vr(vT+5, 2)}, {vr(vO + half*16 + 2*j, 2)}')
        A('s_branch M_merged')

        for first in (1, 0):
            self.L(f'M_drain{first}')
            if not self.notail:
                A('s_barrier')
            A(f's_lshl_b32 s{sU}, s2, 12')
            A(f's_add_u32 s{sU}, s{sU}, {WS_P}')
            A(f's_lshl_b32 s{sU+2}, s2, 7')
            A(f's_add_u32 s{sU+2}, s{sU+2}, {WS_ML}')
            self.tile(first, False, 48, 32)
            self.tile(1 - first, False, 16, 0)
            if first == 1:
                A('s_branch M_pub')
        self.L('M_pub')
        self.stamp(2)
        if self.notail:
            A('s_branch M_fin')
        self.xlane(vL, vT, 'v_add_f32')
        A(f'v_mov_b32 v{PUB+16}, v{vM}')
        A(f'v_mov_b32 v{PUB+18}, v{vL}')
        A(f's_cmp_eq_u32 s{sSAME}, 2')
        A('s_cbranch_scc0 M_pubx')
        for pol in ('', ' sc1'):
            if pol:
                self.L('M_pubx')
            for j in range(8):
                A(f'v_cndmask_b32 v{vT+1}, v{vO+4*j}, v{vO+4*j+1}, s[{sMG1}:{sMG1+1}]')
                A(f'v_cndmask_b32 v{vT+2}, v{vO+4*j+2}, v{vO+4*j+3}, s[{sMG1}:{sMG1+1}]')
                A(f'v_cndmask_b32 v{PUB+2*j}, v{vT+1}, v{vT+2}, s[{sMG2}:{sMG2+1}]')
                if j & 1:
                    A(f'buffer_store_dwordx4 {vr(PUB + 2*(j-1))}, v{vT+8}, {srd(sWS)}, s{sU} offen offset:{1024*(j >> 1)}{pol}')
            A('s_mov_b64 exec, 3')
            A(f'buffer_store_dwordx4 {vr(PUB+16)}, v{vT+8}, {srd(sWS)}, s{sU+2} offen{pol}')
            A('s_mov_b64 exec, -1')
            if not pol:
                A('s_branch M_pubd')
        self.L('M_pubd')
        self.set_flag(4)
        self.stamp(3)
        A('s_branch M_fin')

        self.L('M_w1')
        self.stream_init()
        self.wait_flag(2)
        self.startup_loads(16384)
        if not self.noq:
            self.wait_flag(0, True)
        self.stamp(1)
        self.q_frags()
        self.tile(0, False, 48, 32)
        self.tile(1, False, 16, 0)
        A(f'v_lshlrev_b32 v{vT+4}, 4, v{vLANE}')
        A(f'v_mov_b32 v{vB}, v{vM}')
        A(f'v_mov_b32 v{vB+1}, v{vL}')
        A('s_nop 5')
        for j in range(8):
            A(f'ds_write_b128 v{vT+4}, {vr(vO + 4*j)} offset:{L_H + j*1024}')
        A(f'ds_write_b128 v{vT+4}, {vr(vB)} offset:{L_H + 8*1024}')
        self.set_flag(3)
        self.stamp(2)
        if self.notail:
            A('s_branch M_fin')
        if self.noq:
            self.wait_flag(0, True)
        A('s_cmp_ge_u32 s2, 224')
        A('s_cbranch_scc1 M_fin')
        A('s_barrier')
        if self.nogather:
            A('s_branch M_fin')
        self.gather(0, 4 if self.g44 else 3)
        self.set_flag(5)
        A('s_branch M_fin')

        self.L('M_w3')
        if self.notail:
            A('s_branch M_fin')
        A('s_cmp_ge_u32 s2, 224')
        A('s_cbranch_scc1 M_fin')
        if not self.wolate and not self.womid:
            self.wo_frags()
        self.wait_flag(0, True)
        if not self.wolate and self.womid:
            self.wait_flag(3)
            self.wo_frags()
        if not self.wolate:
            self.gemv_prep()
            self.reduce_prep()
        A('s_barrier')
        if self.wolate and not self.nowo:
            self.wo_frags()
        if self.nogather:
            A('s_branch M_fin')
        if self.wolate:
            self.gemv_prep()
            self.reduce_prep()
        self.stamp(3)
        if not self.g44:
            self.gather(6, 2)
        self.wait_flag(5, word2=6)
        self.stamp(4)
        self.gemv()
        self.stamp(2)
        self.reduce()
        A('s_branch M_fin')

        self.L('M_w2')
        if self.noprod:
            A('s_barrier')
            A('s_branch M_fin')
        A('s_setprio 3')
        A(f's_load_dword s{sG}, s[18:19], {WS_G}')
        if self.bar0 != 1:
            A('s_barrier')
        A(f's_and_b32 s{sU}, s2, 3')
        A(f's_cmp_lg_u32 s{sU}, 0')
        A('s_cbranch_scc1 M_noprod1')
        self.q_issue()
        self.L('M_noprod1')
        if self.bar0 == 1:
            A('s_barrier')
        self.q_tag()
        A(f's_getreg_b32 s{sSAME}, hwreg(HW_REG_XCC_ID, 0, 4)')
        A(f's_bfe_u32 s{sU+7}, s2, {(3 << 16) | 2}')
        A(f's_lshl_b32 s{sU+7}, s{sU+7}, 8')
        A(f's_add_u32 s{sU+7}, s{sU+7}, {WS_X}')
        A(f's_lshr_b32 s{sU+1}, s2, 5')
        A(f's_lshl_b32 s{sU+1}, s{sU+1}, 5')
        A(f's_and_b32 s{sU+2}, s2, 3')
        A(f's_lshl_b32 s{sU+2}, s{sU+2}, 3')
        A(f's_add_u32 s{sU+1}, s{sU+1}, s{sU+2}')
        A(f'v_mov_b32 v{vT+4}, s{sU+1}')
        A(f'v_mov_b32 v{vT+5}, s{sSAME}')
        A('s_mov_b64 exec, 1')
        A(f'buffer_store_dwordx2 {vr(vT+5, 2)}, v{vT+4}, {srd(sWS)}, s{sU+7} offen sc1')
        A('s_mov_b64 exec, -1')
        A(f's_and_b32 s{sU+1}, s2, 3')
        A(f's_cmp_lg_u32 s{sU+1}, 0')
        A('s_cbranch_scc1 M_noprod2')
        self.q_compute()
        self.L('M_noprod2')
        self.stamp(2)
        if self.nopoll:
            A('s_branch M_fin')
        self.q_gather()
        self.stamp(1)
        A('s_setprio 0')
        self.wait_flag(3)
        A(f'v_and_b32 v{vT}, 31, v{vLANE}')
        A(f'v_lshlrev_b32 v{vT}, 3, v{vT}')
        self.L('M_xpoll')
        A(f'buffer_load_dwordx2 {vr(vS, 2)}, v{vT}, {srd(sWS)}, s{sU+7} offen sc1')
        A('s_waitcnt vmcnt(0)')
        A(f'v_cmp_ne_u32 s[{sMG1}:{sMG1+1}], s{sSAME}, v{vS}')
        A(f'v_cmp_ne_u32 vcc, s{sTAG}, v{vS+1}')
        self.poll_tail('M_xpoll')
        A(f's_cmp_eq_u64 s[{sMG1}:{sMG1+1}], 0')
        A(f's_cselect_b32 s{sU+1}, {2 if self.l2 else 1}, 1')
        A(f'v_mov_b32 v{vT+1}, {L_FL + 28}')
        A(f'v_mov_b32 v{vT+2}, s{sU+1}')
        A(f'ds_write_b32 v{vT+1}, v{vT+2}')
        if self.notail:
            A('s_branch M_fin')
        A('s_cmp_ge_u32 s2, 224')
        A('s_cbranch_scc1 M_fin')
        A('s_barrier')
        if self.nogather:
            A('s_branch M_fin')
        self.gather(*((4, 4) if self.g44 else (3, 3)))
        self.set_flag(6)

        self.L('M_fin')
        if self.ts:
            self.stamp(5)
            A('s_memtime s[94:95]')
            A('s_waitcnt lgkmcnt(0)')
            A(f's_lshl_b32 s{sU}, s2, 3')
            A(f's_add_u32 s{sU}, s{sU}, s3')
            A(f's_lshl_b32 s{sU}, s{sU}, 6')
            A(f's_add_u32 s{sU}, s{sU}, {WS_T}')
            A(f'v_mov_b32 v{vT}, 0')
            A('s_mov_b64 exec, 1')
            if self.dbgt:
                A('s_mov_b64 s[4:5], s[16:17]')
                A('s_mov_b32 s6, 256')
                A('s_mov_b32 s7, 0x00020000')
                A('s_cmp_lg_u32 s2, 0')
                A('s_cbranch_scc1 M_nd')
                A(f's_sub_u32 s{sU+1}, s{sTS+10}, s{sTS}')
                A(f's_sub_u32 s{sU+2}, s{sTS+4}, s{sTS}')
                A(f's_sub_u32 s{sU+3}, s{sTS+2}, s{sTS}')
                A(f'v_mov_b32 v{vB}, s{sU+1}')
                A(f'v_mov_b32 v{vB+1}, s{sU+2}')
                A(f'v_mov_b32 v{vB+2}, s{sU+3}')
                A(f'v_mov_b32 v{vB+3}, 0')
                A(f's_lshl_b32 s{sU+1}, s3, 4')
                A(f'buffer_store_dwordx4 {vr(vB)}, v{vT}, s[4:7], s{sU+1} offen')
                A('s_nop 1')
                self.L('M_nd')
            for i in range(8):
                A(f'v_mov_b32 v{vB}, s{sTS + 2*i}')
                A(f'v_mov_b32 v{vB+1}, s{sTS + 2*i + 1}')
                A(f'buffer_store_dwordx2 {vr(vB, 2)}, v{vT}, {srd(sWS)}, s{sU} offen offset:{8*i}')
                A('s_nop 1')
        self.L('M_end')
        A('s_endpgm')

    def build(self):
        self.o = ['; GQA decode attention block (q-proj + flash-decoding + out-proj) in one launch; generated by bench/gen14.py',
                  f'; @launch grid=(256,1,1) block=(256,1,1) lds={LDS_SIZE}',
                  '.amdgcn_target "amdgcn-amd-amdhsa--gfx950"', '.text']
        self.main()
        self.o += ['.section .rodata,"a"', '.p2align 6',
                   f'.amdhsa_kernel {NAME}',
                   f'  .amdhsa_next_free_vgpr {NV + NA}',
                   '  .amdhsa_next_free_sgpr 100',
                   f'  .amdhsa_accum_offset {NV}',
                   '  .amdhsa_group_segment_fixed_size 0',
                   '  .amdhsa_kernarg_size 64',
                   '  .amdhsa_user_sgpr_count 2',
                   '  .amdhsa_user_sgpr_kernarg_segment_ptr 1',
                   '  .amdhsa_system_sgpr_workgroup_id_x 1',
                   '  .amdhsa_float_denorm_mode_32 3',
                   '.end_amdhsa_kernel']
        return '\n'.join(self.o) + '\n'


if __name__ == '__main__':
    kw = {}
    for a in sys.argv[2:]:
        k, v = a.split('=')
        kw[k] = int(v) if v.isdigit() else v.replace('+', ' ')
    open(sys.argv[1], 'w').write(Gen(**kw).build())
```

```python
import re
import sys

NAME = 'standalone__gqa_block_cached__sampling_kernel'

WS_G = 0
WS_Q = 0x1000
WS_X = 0x2c000
WS_C = 0x30000
WS_P = 0x40000
WS_ML = 0x140000
WS_Y = 0x180000
WS_T = 0x280000
WS_B = 0x300000
WS_SIZE = 0x330000

L_WQ = 0x6a00
L_H = 0x3800
L_o = 0x5c00
L_FL = 0x6500
L_Q = 0x6600
LDS_SIZE = 0x14a00

sK, sV, sWS, sX, sWQ, sWO, sOUT = 20, 24, 28, 32, 36, 40, 44
sTAG, sG, sC1, sSLO, sSHI, sKO, sVO, sT0, sT1, sCNT, sTO = 52, 53, 54, 55, 56, 57, 58, 59, 60, 61, 62
sMG1, sMG2, sCB = 64, 66, 68
sOWN, sISS, sTK, sGB = 48, 49, 50, 51
sSAME = 63
sU = 70
sTS = 80

vLANE, vKOFF, vVOFF, vM, vL, vMA, vMB = 0, 1, 2, 3, 4, 5, 6
vT = 7
vS = 16
vPA, vPB = 24, 28
vB = 32
vAL = 44
vC, vG_ = 46, 47
vV = (48, 112)
vO = 176
vPUB = 208
NV = 228
aK = (0, 64)
aQ = 128
NA = 160


def srd(n):
    return f's[{n}:{n+3}]'


def vr(n, k=4):
    return f'v[{n}:{n+k-1}]'


def ar(n, k=4):
    return f'a[{n}:{n+k-1}]'


class Gen:
    def __init__(self, **kw):
        self.o = []
        self.uid = 0
        self.pend = []
        d = dict(ts=0, timeout=1 << 18, kf=1, vf=0, sd=32, notail=0, noq=0, nowo=0, wolate=1, nocomp=0, noprod=0,
                 bar0=1, nopoll=0, pollstart=1, psleep=0, nogather=0, p2wait=0, qdelay=0, kpol='nt', vpol='nt', S=61, nset=1, stag=6, spec=16, g44=0, womid=0, remap=1, bper=4, l2=1, r2=1, rs=1, dbgt=0)
        for k in kw:
            assert k in d, k
        d.update(kw)
        self.__dict__.update(d)

    def A(self, s):
        if s.startswith('buffer_'):
            m = re.search(r'offset:(\d+)', s)
            assert not m or int(m.group(1)) < 4096, s
        self.o.append('    ' + s)

    def hstore(self, data, voff, soff, imm=0):
        o = f' offset:{imm}' if imm else ''
        self.A(f'buffer_store_dwordx4 {data}, {voff}, {srd(sWS)}, s{soff} offen{o}')
        self.pend.append((data, voff, soff, imm))

    def hflush(self, tmp):
        last = None
        for data, voff, soff, imm in self.pend:
            if soff != last:
                self.A(f's_add_u32 s{tmp}, s{soff}, {WS_B}')
                last = soff
            o = f' offset:{imm}' if imm else ''
            self.A(f'buffer_store_dwordx4 {data}, {voff}, {srd(sWS)}, s{tmp} offen{o} sc1')
        self.pend = []

    def L(self, s):
        self.o.append(s + ':')

    def lab(self, p):
        self.uid += 1
        return f'{p}_{self.uid}'

    def stamp(self, i):
        if self.ts:
            n = sTS + 2 * i
            self.A(f's_memrealtime s[{n}:{n+1}]')

    def prologue(self):
        A = self.A
        A('s_cmp_ge_u32 s2, 256')
        A('s_cbranch_scc1 M_end')
        A('s_load_dwordx16 s[4:19], s[0:1], 0')
        if self.remap:
            A(f's_and_b32 s{sU}, s2, 7')
            A(f's_lshl_b32 s{sU}, s{sU}, 2')
            A(f's_bfe_u32 s{sU+1}, s2, {(2 << 16) | 3}')
            A(f's_and_b32 s2, s2, 0xe0')
            A(f's_or_b32 s2, s2, s{sU}')
            A(f's_or_b32 s2, s2, s{sU+1}')
            if self.remap == 2:
                A(f's_cmp_eq_u32 s2, 37')
                A(f's_cselect_b32 s{sU}, 41, s2')
                A(f's_cmp_eq_u32 s2, 41')
                A(f's_cselect_b32 s2, 37, s{sU}')
        A(f'v_lshrrev_b32 v{vT}, 6, v0')
        A(f'v_and_b32 v{vLANE}, 63, v0')
        A(f'v_readfirstlane_b32 s3, v{vT}')
        A(f'v_mov_b32 v{vT+1}, {L_FL}')
        A(f'v_mov_b32 v{vS}, 0')
        A(f'v_mov_b32 v{vS+1}, 0')
        A(f'v_mov_b32 v{vS+2}, 0')
        A(f'v_mov_b32 v{vS+3}, 0')
        A(f'ds_write_b128 v{vT+1}, {vr(vS)}')
        A(f'ds_write_b128 v{vT+1}, {vr(vS)} offset:16')
        A(f'v_and_b32 v{vC}, 15, v{vLANE}')
        A(f'v_lshrrev_b32 v{vG_}, 4, v{vLANE}')
        A(f'v_lshlrev_b32 v{vKOFF}, 9, v{vC}')
        A(f'v_lshl_add_u32 v{vKOFF}, v{vG_}, 4, v{vKOFF}')
        A(f'v_lshlrev_b32 v{vVOFF}, 11, v{vG_}')
        A(f'v_lshl_add_u32 v{vVOFF}, v{vC}, 4, v{vVOFF}')
        A(f's_lshl_b32 s{sKO}, s2, 20')
        A(f's_lshl_b32 s{sT0}, s3, 15')
        A(f's_add_u32 s{sKO}, s{sKO}, s{sT0}')
        A(f's_mov_b32 s{sVO}, s{sKO}')
        for n, size in ((sK, 0x10000000), (sV, 0x10000000), (sWS, WS_SIZE), (sX, 8 * 448 * 2), (sWQ, 448 * 4096 * 2),
                        (sWO, 4096 * 448 * 2), (sOUT, 8 * 448 * 2)):
            A(f's_mov_b32 s{n+2}, {size:#x}')
            A(f's_mov_b32 s{n+3}, 0x00020000')
        A(f's_mov_b32 s{sTO}, {self.timeout}')
        A(f's_mov_b32 s{sC1}, 0x3db8aa3b')
        A(f's_mov_b32 s{sSLO}, 0x05040100')
        A(f's_mov_b32 s{sSHI}, 0x07060302')
        A('s_waitcnt lgkmcnt(0)')
        for n, p in ((sX, 4), (sWQ, 10), (sK, 6), (sV, 8), (sWS, 18), (sWO, 12), (sOUT, 14)):
            A(f's_mov_b64 s[{n}:{n+1}], s[{p}:{p+1}]')

    def masks(self):
        A = self.A
        A(f'v_and_b32 v{vT+1}, 1, v{vG_}')
        A(f'v_and_b32 v{vT+2}, 2, v{vG_}')
        A(f'v_cmp_ne_u32 s[{sMG1}:{sMG1+1}], 0, v{vT+1}')
        A(f'v_cmp_ne_u32 s[{sMG2}:{sMG2+1}], 0, v{vT+2}')

    def wait_flag(self, word, also_tag=False, word2=None):
        A = self.A
        lw, ok = self.lab('W'), self.lab('K')
        A(f'v_mov_b32 v{vT+1}, {L_FL}')
        A(f's_mov_b32 s{sU+5}, {self.timeout * 8}')
        self.L(lw)
        A(f'ds_read_b128 {vr(vB)}, v{vT+1} offset:{(word >> 2) * 16}')
        A(f's_sub_u32 s{sU+5}, s{sU+5}, 1')
        A(f's_cmp_eq_u32 s{sU+5}, 0')
        A('s_cbranch_scc1 M_end')
        A('s_waitcnt lgkmcnt(0)')
        A(f'v_readfirstlane_b32 s{sU+9}, v{vB+(word & 3)}')
        if also_tag:
            A(f'v_readfirstlane_b32 s{sTAG}, v{vB+1}')
        elif word2 is not None:
            A(f'v_readfirstlane_b32 s{sU+1}, v{vB+(word2 & 3)}')
            A('s_nop 0')
            A(f's_and_b32 s{sU+9}, s{sU+9}, s{sU+1}')
        else:
            A('s_nop 0')
        A(f's_cmp_lg_u32 s{sU+9}, 0')
        A(f's_cbranch_scc1 {ok}')
        A('s_sleep 1')
        A(f's_branch {lw}')
        self.L(ok)

    def set_flag(self, word):
        A = self.A
        A(f'v_mov_b32 v{vT+1}, {L_FL + 4*word}')
        A(f'v_mov_b32 v{vT+2}, 1')
        A(f'ds_write_b32 v{vT+1}, v{vT+2}')

    QX, QB = 48, 112

    def q_issue(self):
        A = self.A
        A(f's_bfe_u32 s{sU}, s2, {(3 << 16) | 2}')
        A(f's_lshl_b32 s{sU}, s{sU}, 3')
        A(f's_lshr_b32 s{sU+2}, s2, 5')
        A(f's_add_u32 s{sU}, s{sU}, s{sU+2}')
        A(f's_lshr_b32 s{sU+1}, s2, 2')
        A(f's_lshl_b32 s{sU+1}, s{sU+1}, 8')
        A(f's_add_u32 s{sU+1}, s{sU+1}, {WS_C}')
        A(f'v_mov_b32 v{vT+2}, 0')
        A('s_mov_b64 exec, 1')
        A(f'buffer_store_dword v{vT+2}, v{vT+2}, {srd(sWS)}, s{sU+1} offen sc1')
        A('s_mov_b64 exec, -1')
        A(f's_lshl_b32 s{sU+1}, s{sU}, 7')
        A(f'v_lshrrev_b32 v{vT}, 3, v{vLANE}')
        A(f'v_lshlrev_b32 v{vT}, 13, v{vT}')
        A(f'v_and_b32 v{vT+1}, 7, v{vLANE}')
        A(f'v_lshl_add_u32 v{vT}, v{vT+1}, 4, v{vT}')
        A(f'v_and_b32 v{vT+1}, 7, v{vC}')
        A(f'v_mul_u32_u24 v{vT+1}, 896, v{vT+1}')
        A(f'v_lshl_add_u32 v{vT+1}, v{vG_}, 4, v{vT+1}')
        for kt in range(14):
            A(f'buffer_load_dwordx4 {vr(self.QX + 4*kt)}, v{vT+1}, {srd(sX)}, 0 offen offset:{64*kt}')
        for n in range(56):
            A(f's_mov_b32 m0, {L_WQ + n*1024}')
            A(f's_add_u32 s{sU+3}, s{sU+1}, {n*65536}')
            A(f'buffer_load_dwordx4 v{vT}, {srd(sWQ)}, s{sU+3} offen nt lds')

    def q_tag(self):
        A = self.A
        A(f's_lshr_b32 s{sU+4}, s2, 2')
        A(f's_lshl_b32 s{sU+4}, s{sU+4}, 11')
        A(f's_add_u32 s{sU+4}, s{sU+4}, {WS_Q}')
        A(f'v_lshlrev_b32 v{vT}, 4, v{vLANE}')
        A(f'v_lshlrev_b32 v{vT+7}, 7, v{vG_}')
        A(f'v_bfe_u32 v{vT+4}, v{vC}, 2, 1')
        A(f'v_lshl_add_u32 v{vT+7}, v{vT+4}, 6, v{vT+7}')
        A(f'v_lshrrev_b32 v{vT+4}, 3, v{vC}')
        A(f'v_lshl_add_u32 v{vT+7}, v{vT+4}, 5, v{vT+7}')
        A(f'v_and_b32 v{vT+4}, 3, v{vC}')
        A(f'v_lshl_add_u32 v{vT+7}, v{vT+4}, 3, v{vT+7}')
        A(f'v_add_u32 v{vT+7}, {L_Q}, v{vT+7}')
        A('s_waitcnt lgkmcnt(0)')
        A(f's_add_u32 s{sG}, s{sG}, 1')
        A(f's_mul_i32 s{sTAG}, s{sG}, 0x9e3779b1')
        A(f's_xor_b32 s{sTAG}, s{sTAG}, 0x5bd1e995')
        A(f'v_mov_b32 v{vT+6}, s{sTAG}')

    def q_compute(self):
        A = self.A
        QX, QB = self.QX, self.QB
        DQ = vO
        A(f'v_lshrrev_b32 v{vT+2}, 2, v{vC}')
        A(f'v_lshl_add_u32 v{vT+2}, v{vG_}, 3, v{vT+2}')
        A(f'v_lshlrev_b32 v{vT+2}, 7, v{vT+2}')
        A(f'v_and_b32 v{vT+3}, 3, v{vC}')
        A(f'v_lshl_add_u32 v{vT+2}, v{vT+3}, 3, v{vT+2}')
        A(f'v_add_u32 v{vT+2}, {L_WQ}, v{vT+2}')
        A(f'v_and_b32 v{vT+3}, 7, v{vC}')
        A(f'v_lshlrev_b32 v{vT+3}, 14, v{vT+3}')
        A(f'v_lshrrev_b32 v{vT+4}, 3, v{vC}')
        A(f'v_cmp_ne_u32 s[{sMG1}:{sMG1+1}], 0, v{vT+4}')
        A(f'v_lshl_add_u32 v{vT+3}, v{vT+4}, 6, v{vT+3}')
        A(f'v_lshl_add_u32 v{vT+3}, v{vG_}, 4, v{vT+3}')
        A(f's_lshl_b32 s{sU+1}, s{sU}, 8')
        A(f's_add_u32 s{sU+1}, s{sU+1}, {WS_Q}')
        for q in range(4):
            A(f'v_mov_b32 v{vS + 2*q + 1}, s{sTAG}')

        def reads(kt):
            A(f's_waitcnt vmcnt({53 - 4*kt})')
            for ct in range(4):
                r = QB + (kt & 1)*16 + ct*4
                A(f'ds_read_b64_tr_b16 {vr(r, 2)}, v{vT+2} offset:{kt*4096 + ct*32}')
                A(f'ds_read_b64_tr_b16 {vr(r + 2, 2)}, v{vT+2} offset:{kt*4096 + ct*32 + 512}')
        reads(0)
        for kt in range(14):
            if kt < 13:
                reads(kt + 1)
                A('s_waitcnt lgkmcnt(8)')
            else:
                self.stamp(3)
                A('s_waitcnt lgkmcnt(0)')
            for ct in range(4):
                c = '0' if kt == 0 else vr(DQ + 4*ct)
                A(f'v_mfma_f32_16x16x32_bf16 {vr(DQ + 4*ct)}, {vr(QB + (kt & 1)*16 + 4*ct)}, {vr(QX + 4*kt)}, {c}')
        A('s_nop 7')
        for st in range(2):
            for r in range(4):
                A(f'v_cndmask_b32 v{vB + r}, v{DQ + 4*st + r}, v{DQ + 8 + 4*st + r}, s[{sMG1}:{sMG1+1}]')
            A(f'v_cvt_pk_bf16_f32 v{vS + 4*st}, v{vB}, v{vB+1}')
            A(f'v_cvt_pk_bf16_f32 v{vS + 4*st + 2}, v{vB+2}, v{vB+3}')
            self.hstore(vr(vS + 4*st), f'v{vT+3}', sU+1, 128*st)
        self.hflush(sU+2)

    def q_gather(self):
        A = self.A
        F = vV[0]
        if self.qdelay:
            self.wait_flag(2)
        A(f'v_mov_b32 v{vT+8}, {L_FL}')
        A(f'v_mov_b32 v{vT+5}, 1')
        self.L('M_qpoll')
        A(f's_and_b32 s{sU+1}, s{sTO}, {self.bper - 1}')
        A(f's_cmp_eq_u32 s{sU+1}, 1')
        A(f's_cselect_b32 s{sU+1}, {WS_B}, 0')
        A(f's_add_u32 s{sU+1}, s{sU+1}, s{sU+4}')
        for n in range(2):
            A(f'buffer_load_dwordx4 {vr(F + 4*n)}, v{vT}, {srd(sWS)}, s{sU+1} offen offset:{1024*n} sc1')
        A('s_waitcnt vmcnt(0)')
        for q in range(4):
            A(f'v_xor_b32 v{F + 2*q + 1}, s{sTAG}, v{F + 2*q + 1}')
        A(f'v_or3_b32 v{vT+2}, v{F+1}, v{F+3}, v{F+5}')
        A(f'v_or_b32 v{vT+2}, v{vT+2}, v{F+7}')
        A(f'v_cmp_ne_u32 vcc, 0, v{vT+2}')
        self.poll_tail('M_qpoll')
        A(f'ds_write2_b32 v{vT+7}, v{F}, v{F+2} offset0:0 offset1:1')
        A(f'ds_write2_b32 v{vT+7}, v{F+4}, v{F+6} offset0:128 offset1:129')
        A(f'ds_write_b64 v{vT+8}, {vr(vT+5, 2)}')

    def poll_tail(self, lab):
        A = self.A
        A(f's_sub_u32 s{sTO}, s{sTO}, 1')
        A(f's_cmp_eq_u32 s{sTO}, 0')
        A('s_cbranch_scc1 M_end')
        A(f's_cbranch_vccnz {lab}')

    def k_load(self, buf, j):
        so = f's{sT0}' if j >> 3 else f's{sKO}'
        self.A(f'buffer_load_dwordx4 {ar(aK[buf] + 4*j)}, v{vKOFF}, {srd(sK)}, {so} offen offset:{(j & 7)*64} {self.kpol}')

    def v_load(self, buf, half, i):
        so = f's{sT1}' if i >> 2 else f's{sVO}'
        self.A(f'buffer_load_dwordx4 {vr(vV[buf] + half*32 + 4*i)}, v{vVOFF}, {srd(sV)}, {so} offen '
               f'offset:{(i & 3)*512 + half*256} {self.vpol}')

    def k_issue(self, buf, step=16384):
        self.A(f's_add_u32 s{sT0}, s{sKO}, 8192')
        for j in range(16):
            self.k_load(buf, j)
        self.A(f's_add_u32 s{sKO}, s{sKO}, {step}')

    def v_issue(self, buf, step=16384):
        self.A(f's_add_u32 s{sT1}, s{sVO}, 8192')
        if self.vf:
            for half in range(2):
                for i in range(8):
                    self.v_load(buf, half, i)
        else:
            for i in range(8):
                for half in range(2):
                    self.v_load(buf, half, i)
        self.A(f's_add_u32 s{sVO}, s{sVO}, {step}')

    def xlane(self, t0, t1, op):
        A = self.A
        for ins in ('v_permlane16_swap_b32', 'v_permlane32_swap_b32'):
            A(f'v_mov_b32 v{t1}, v{t0}')
            A('s_nop 1')
            A(f'{ins} v{t0}, v{t1}')
            A('s_nop 0')
            A(f'{op} v{t0}, v{t0}, v{t1}')

    def tile(self, buf, refill, wk, wv):
        A0 = self.A
        def A(x):
            if self.nocomp and (x.startswith('v_') or x.startswith('s_nop')):
                return
            A0(x)
        A(f's_waitcnt vmcnt({wk})')
        kf = self.kf and refill
        if kf:
            A(f's_add_u32 s{sT0}, s{sKO}, 8192')
        for j in range(16):
            T, s = j >> 3, j & 7
            c = '0' if s == 0 else vr(vS + 4*T)
            A(f'v_mfma_f32_16x16x32_bf16 {vr(vS + 4*T)}, {ar(aK[buf] + 4*j)}, {ar(aQ + 4*s)}, {c}')
            if kf:
                self.k_load(buf, j)
        if kf:
            A(f's_add_u32 s{sKO}, s{sKO}, 16384')
            A('s_nop 5')
        elif refill:
            self.k_issue(buf)
        else:
            A('s_nop 6')
        t0, t1, t2, al = vT, vT + 1, vT + 2, vT + 3
        if self.rs:
            for u in range(4):
                A(f'v_cvt_pk_bf16_f32 v{vPA+u}, v{vS+2*u}, v{vS+2*u+1}')
            for u in range(4):
                A(f'v_lshlrev_b32 v{vS+2*u}, 16, v{vPA+u}')
                A(f'v_and_b32 v{vS+2*u+1}, 0xffff0000, v{vPA+u}')
        A(f'v_max3_f32 v{t0}, v{vS}, v{vS+1}, v{vS+2}')
        A(f'v_max3_f32 v{t0}, v{t0}, v{vS+3}, v{vS+4}')
        A(f'v_max3_f32 v{t0}, v{t0}, v{vS+5}, v{vS+6}')
        A(f'v_max_f32 v{t0}, v{t0}, v{vS+7}')
        self.xlane(t0, t1, 'v_max_f32')
        A(f'v_mul_f32 v{t0}, s{sC1}, v{t0}')
        A(f'v_max_f32 v{t0}, v{vM}, v{t0}')
        A(f'v_sub_f32 v{t1}, v{vM}, v{t0}')
        A(f'v_exp_f32 v{al}, v{t1}')
        A(f'v_mov_b32 v{vM}, v{t0}')
        for e in range(8):
            A(f'v_fma_f32 v{vS+e}, v{vS+e}, s{sC1}, -v{t0}')
        for e in range(8):
            A(f'v_exp_f32 v{vS+e}, v{vS+e}')
        A(f'v_mov_b32_dpp v{vAL}, v{al} quad_perm:[0,0,2,2] row_mask:0xf bank_mask:0xf')
        A(f'v_mov_b32_dpp v{vAL+1}, v{al} quad_perm:[1,1,3,3] row_mask:0xf bank_mask:0xf')
        for u in range(4):
            A(f'v_cvt_pk_bf16_f32 v{vPB+u}, v{vS+2*u}, v{vS+2*u+1}')
        A(f'v_add_f32 v{t1}, v{vS}, v{vS+1}')
        A(f'v_add_f32 v{t2}, v{vS+2}, v{vS+3}')
        A(f'v_add_f32 v{t0}, v{vS+4}, v{vS+5}')
        A(f'v_add_f32 v{t1}, v{t1}, v{t2}')
        A(f'v_add_f32 v{t2}, v{vS+6}, v{vS+7}')
        A(f'v_add_f32 v{t0}, v{t0}, v{t2}')
        A(f'v_add_f32 v{t1}, v{t1}, v{t0}')
        A(f'v_fma_f32 v{vL}, v{vL}, v{al}, v{t1}')
        for u in range(4):
            A(f'v_and_b32 v{vPA+u}, v{vMA}, v{vPB+u}')
            A(f'v_and_b32 v{vPB+u}, v{vMB}, v{vPB+u}')
        for j in range(16):
            A(f'v_pk_mul_f32 {vr(vO + 2*j, 2)}, {vr(vO + 2*j, 2)}, {vr(vAL, 2)}')
        A(f's_waitcnt vmcnt({wv})')
        vf = self.vf and refill
        if vf:
            A(f's_add_u32 s{sT1}, s{sVO}, 8192')
        for half in range(2):
            P = vPB if half else vPA

            def perms(j):
                b = vB + 4 * (j % 3)
                t = j >> 1
                sel = sSHI if j & 1 else sSLO
                for u in range(4):
                    lo = vV[buf] + half*32 + 4*(2*u) + t
                    hi = vV[buf] + half*32 + 4*(2*u + 1) + t
                    A(f'v_perm_b32 v{b+u}, v{hi}, v{lo}, s{sel}')

            perms(0)
            for j in range(8):
                if j < 7:
                    perms(j + 1)
                else:
                    A('s_nop 1')
                A(f'v_mfma_f32_16x16x32_bf16 {vr(vO + 4*j)}, {vr(P)}, {vr(vB + 4*(j % 3))}, {vr(vO + 4*j)}')
            if vf:
                for i in range(8):
                    self.v_load(buf, half, i)
        if vf:
            A(f's_add_u32 s{sVO}, s{sVO}, 16384')
        elif refill:
            self.v_issue(buf)

    def stream_init(self):
        A = self.A
        A(f'v_mov_b32 v{vM}, 0xff7fffff')
        A(f'v_mov_b32 v{vL}, 0')
        A(f'v_and_b32 v{vT}, 2, v{vC}')
        A(f'v_cmp_eq_u32 vcc, 0, v{vT}')
        self.masks()
        A(f'v_cndmask_b32 v{vMA}, 0, -1, vcc')
        A(f'v_not_b32 v{vMB}, v{vMA}')
        for j in range(32):
            A(f'v_mov_b32 v{vO+j}, 0')

    def q_frags(self):
        A = self.A
        A(f'v_and_b32 v{vT}, 1, v{vC}')
        A(f'v_lshlrev_b32 v{vT}, 9, v{vT}')
        A(f'v_lshl_add_u32 v{vT}, v{vG_}, 4, v{vT}')
        for s in range(8):
            A(f'ds_read_b128 {ar(aQ + 4*s)}, v{vT} offset:{L_Q + 64*s}')
        A('s_waitcnt lgkmcnt(0)')

    def startup_loads(self, second_step, bar=False):
        A = self.A
        sd = self.sd
        self.k_issue(0)
        if sd < 32:
            A(f's_waitcnt vmcnt({sd - 16})')
        self.v_issue(0)
        if bar:
            A('s_barrier')
        if sd < 48:
            A(f's_waitcnt vmcnt({sd - 16})')
        self.stamp(4)
        self.k_issue(1, second_step)
        if sd < 64:
            A(f's_waitcnt vmcnt({sd - 16})')
        self.v_issue(1, second_step)

    def wo_frags(self):
        A = self.A
        R = vV[0]
        A(f's_and_b32 s{sU+6}, s2, 31')
        A(f's_mul_i32 s{sU+6}, s{sU+6}, {128*896}')
        A(f's_lshr_b32 s{sU+1}, s2, 5')
        A(f's_lshl_b32 s{sU+1}, s{sU+1}, 7')
        A(f's_add_u32 s{sU+6}, s{sU+6}, s{sU+1}')
        A(f'v_mul_u32_u24 v{vT+8}, 7168, v{vG_}')
        A(f'v_lshl_add_u32 v{vT+8}, v{vC}, 3, v{vT+8}')
        for ks in range(4):
            for i in range(8):
                if (i & 3) == 0:
                    A(f's_add_u32 s{sU+1}, s{sU+6}, {ks*32*896 + (i >> 2)*3584}')
                A(f'buffer_load_dwordx2 {vr(R + ks*16 + 2*i, 2)}, v{vT+8}, {srd(sWO)}, s{sU+1} offen offset:{(i & 3)*896} nt')
        for ks in range(4):
            A(f's_waitcnt vmcnt({24 - 8*ks})')
            for t in range(2):
                for u in range(4):
                    lo = R + ks*16 + 2*(2*u) + t
                    hi = R + ks*16 + 2*(2*u+1) + t
                    A(f'v_perm_b32 v{vS + (2*t)*4 + u}, v{hi}, v{lo}, s{sSLO}')
                    A(f'v_perm_b32 v{vS + (2*t+1)*4 + u}, v{hi}, v{lo}, s{sSHI}')
            for q in range(16):
                A(f'v_accvgpr_write_b32 a{ks*16 + q}, v{vS + q}')

    def gather(self, b0, n):
        A = self.A
        D = vV[0]
        ML = vO
        ns = 4 * n
        ALL = (1 << ns) - 1
        sD, sM, sDone, sGot, sRdy, sNeed = sU + 2, sU + 3, sU + 4, sKO, sVO, sT0
        sW = 96
        sRnd, sD2 = 12, 13
        sW2 = 4
        A(f's_and_b32 s{sU}, s2, 28')
        A(f's_add_u32 s{sU}, s{sU}, {b0*32}')
        A(f's_and_b32 s{sU+1}, s2, 3')
        A(f's_lshl_b32 s{sD}, s{sU}, 12')
        A(f's_and_b32 s{sU+6}, s{sU+1}, 1')
        A(f's_lshl_b32 s{sU+6}, s{sU+6}, 9')
        A(f's_add_u32 s{sD}, s{sD}, s{sU+6}')
        A(f's_lshr_b32 s{sU+6}, s{sU+1}, 1')
        A(f's_lshl_b32 s{sU+6}, s{sU+6}, 8')
        A(f's_add_u32 s{sD}, s{sD}, s{sU+6}')
        A(f's_add_u32 s{sD}, s{sD}, {WS_P}')
        A(f's_lshl_b32 s{sM}, s{sU}, 7')
        A(f's_lshr_b32 s{sU+1}, s{sU+1}, 1')
        A(f's_lshl_b32 s{sU+1}, s{sU+1}, 4')
        A(f's_add_u32 s{sM}, s{sM}, s{sU+1}')
        A(f's_add_u32 s{sM}, s{sM}, {WS_ML}')
        A(f'v_lshlrev_b32 v{vT+7}, 10, v{vG_}')
        A(f'v_lshl_add_u32 v{vT+7}, v{vC}, 4, v{vT+7}')
        A(f'v_min_u32 v{vT+8}, {ns-1}, v{vC}')
        A(f'v_lshrrev_b32 v{vT+6}, 2, v{vT+8}')
        A(f'v_lshlrev_b32 v{vT+6}, 12, v{vT+6}')
        A(f'v_and_b32 v{vT+8}, 3, v{vT+8}')
        A(f'v_lshl_add_u32 v{vT+8}, v{vT+8}, 7, v{vT+6}')
        A(f'v_lshlrev_b32 v{vT+6}, 4, v{vC}')
        A(f'v_lshl_add_u32 v{vT+6}, v{vG_}, 2, v{vT+6}')
        A(f's_not_b32 s{sU+1}, s{sTAG}')
        for src in range(ns):
            A(f'v_mov_b32 v{D + 4*src + 1}, s{sU+1}')
        A(f'v_mov_b32 v{ML}, 0')
        A(f'v_mov_b32 v{ML+1}, s{sU+1}')
        A(f'v_mov_b32 v{ML+2}, 1.0')
        A(f'v_mov_b32 v{ML+3}, s{sU+1}')
        A(f's_mov_b32 s{sDone}, 0')
        A(f's_mov_b32 s{sGot}, 0')
        A(f's_mov_b32 s{sRdy}, 0')
        if self.pollstart:
            self.wait_flag(4)
        top = self.lab('G')
        if self.ts and b0 < 6:
            self.stamp(3)
            A(f's_mov_b32 s{sCNT}, 0')
        self.L(top)
        if self.ts and b0 < 6:
            A(f's_add_u32 s{sCNT}, s{sCNT}, 1')
            A(f's_mov_b32 s{sTS+8}, s{sCNT}')
            A(f's_mov_b32 s{sTS+9}, 0')
        A(f's_andn2_b32 s{sU+1}, {ALL}, s{sRdy}')
        A(f's_mov_b32 exec_lo, s{sU+1}')
        A('s_mov_b32 exec_hi, 0')
        A(f'buffer_load_dwordx4 {vr(ML)}, v{vT+8}, {srd(sWS)}, s{sM} offen sc1')
        A('s_mov_b64 exec, -1')
        A(f's_bcnt1_i32_b32 s{sU+1}, s{sU+1}')
        A(f's_cmp_le_u32 s{sU+1}, {self.spec}')
        A(f's_cselect_b32 s{sNeed}, {ALL}, s{sRdy}')
        A(f's_andn2_b32 s{sNeed}, s{sNeed}, s{sGot}')
        for k in range(n):
            sk = self.lab('GS')
            A(f's_bfe_u32 s{sU+1}, s{sNeed}, {(4 << 16) | (4*k)}')
            A(f's_cbranch_scc0 {sk}')
            for sp in range(4):
                src = 4*k + sp
                A(f's_bitcmp1_b32 s{sNeed}, {src}')
                A('s_cselect_b64 exec, -1, 0')
                A(f's_add_u32 s{sU+1}, s{sD}, {k*32*4096 + sp*4096}')
                A(f'buffer_load_dwordx4 {vr(D + 4*src)}, v{vT+7}, {srd(sWS)}, s{sU+1} offen sc1')
            A('s_mov_b64 exec, -1')
            self.L(sk)
        A('s_waitcnt vmcnt(0)')
        A(f'v_xor_b32 v{vT+2}, s{sTAG}, v{ML+1}')
        A(f'v_xor_b32 v{vT+3}, s{sTAG}, v{ML+3}')
        A(f'v_or_b32 v{vT+2}, v{vT+2}, v{vT+3}')
        A(f'v_cmp_eq_u32 vcc, 0, v{vT+2}')
        A(f'v_max_f32_dpp v{vT+2}, v{ML}, v{ML} quad_perm:[1,0,3,2] row_mask:0xf bank_mask:0xf')
        A(f's_and_b32 s{sRdy}, vcc_lo, {ALL}')
        A('s_nop 0')
        A(f'v_max_f32_dpp v{vT+2}, v{vT+2}, v{vT+2} quad_perm:[2,3,0,1] row_mask:0xf bank_mask:0xf')
        A(f'v_sub_f32 v{vT+2}, v{ML}, v{vT+2}')
        A(f'v_exp_f32 v{vT+2}, v{vT+2}')
        A('s_nop 0')
        A(f'v_mul_f32 v{vT+3}, v{vT+2}, v{ML+2}')
        A('s_nop 1')
        A(f'v_add_f32_dpp v{vT+3}, v{vT+3}, v{vT+3} quad_perm:[1,0,3,2] row_mask:0xf bank_mask:0xf')
        A('s_nop 1')
        A(f'v_add_f32_dpp v{vT+3}, v{vT+3}, v{vT+3} quad_perm:[2,3,0,1] row_mask:0xf bank_mask:0xf')
        A(f'v_rcp_f32 v{vT+3}, v{vT+3}')
        A('s_nop 0')
        A(f'v_mul_f32 v{vT+5}, v{vT+2}, v{vT+3}')
        for k in range(n):
            sk = self.lab('GB')
            d = D + 16*k
            A(f's_bitcmp1_b32 s{sDone}, {k}')
            A(f's_cbranch_scc1 {sk}')
            for sp in range(4):
                A(f'v_xor_b32 v{vB+2*sp}, s{sTAG}, v{d+4*sp+1}')
                A(f'v_xor_b32 v{vB+2*sp+1}, s{sTAG}, v{d+4*sp+3}')
            for sp in range(4):
                A(f'v_or_b32 v{vB+2*sp}, v{vB+2*sp}, v{vB+2*sp+1}')
            for sp in range(4):
                A(f'v_cmp_ne_u32 s[{sW2+2*sp}:{sW2+2*sp+1}], 0, v{vB+2*sp}')
            for sp in range(4):
                A(f'v_readlane_b32 s{sW+sp}, v{vT+5}, {4*k + sp}')
            for sp in range(4):
                A(f's_cmp_eq_u64 s[{sW2+2*sp}:{sW2+2*sp+1}], 0')
                A(f's_cselect_b32 s{sU+1}, {1 << (4*k + sp)}, 0')
                A(f's_or_b32 s{sGot}, s{sGot}, s{sU+1}')
            A(f'v_mul_f32 v{vT+3}, s{sW}, v{d}')
            A(f'v_mul_f32 v{vT+4}, s{sW}, v{d+2}')
            A(f's_and_b32 s{sU+1}, s{sGot}, s{sRdy}')
            A(f's_bfe_u32 s{sU+1}, s{sU+1}, {(4 << 16) | (4*k)}')
            A(f's_cmp_lg_u32 s{sU+1}, 15')
            A(f's_cbranch_scc1 {sk}')
            for sp in range(1, 4):
                A(f'v_fmac_f32 v{vT+3}, s{sW+sp}, v{d+4*sp}')
                A(f'v_fmac_f32 v{vT+4}, s{sW+sp}, v{d+4*sp+2}')
            A(f'v_cvt_pk_bf16_f32 v{vT+3}, v{vT+3}, v{vT+4}')
            A(f'ds_write_b32 v{vT+6}, v{vT+3} offset:{L_o + (b0 + k)*272}')
            A(f's_bitset1_b32 s{sDone}, {k}')
            self.L(sk)
        A(f's_sub_u32 s{sTO}, s{sTO}, 1')
        A(f's_cmp_eq_u32 s{sTO}, 0')
        A('s_cbranch_scc1 M_end')
        A(f's_cmp_lg_u32 s{sDone}, {(1 << n) - 1}')
        A(f's_cbranch_scc1 {top}')

    def gemv_prep(self):
        A = self.A
        self.masks()
        A(f'v_and_b32 v{vAL}, 7, v{vC}')
        A(f'v_mul_u32_u24 v{vAL}, 272, v{vAL}')
        A(f'v_lshl_add_u32 v{vAL}, v{vG_}, 4, v{vAL}')
        A(f'v_lshlrev_b32 v{vAL+1}, 4, v{vLANE}')
        A(f's_lshl_b32 s{sU+7}, s2, 12')
        A(f's_add_u32 s{sU+7}, s{sU+7}, {WS_Y}')
        for q in range(8):
            A(f'v_mov_b32 v{vV[1] + 2*q + 1}, s{sTAG}')

    def gemv(self):
        A = self.A
        AF = vO
        Y = vO + 16
        P = vV[1]
        for ks in range(4):
            A(f'ds_read_b128 {vr(AF + 4*ks)}, v{vAL} offset:{L_o + 64*ks}')
        for ks in range(4):
            A(f's_waitcnt lgkmcnt({3-ks})')
            for jj in range(4):
                y = Y + 4*jj
                c = '0' if ks == 0 else vr(y)
                A(f'v_mfma_f32_16x16x32_bf16 {vr(y)}, {vr(AF + 4*ks)}, {ar(ks*16 + jj*4)}, {c}')
        A('s_nop 4')
        for jj in range(4):
            for rr in range(2):
                A(f'v_cndmask_b32 v{P + rr*8 + 2*jj}, v{Y + 4*jj + rr}, v{Y + 4*jj + 2 + rr}, s[{sMG2}:{sMG2+1}]')
            if jj & 1:
                for rr in range(2):
                    A(f'buffer_store_dwordx4 {vr(P + rr*8 + 2*(jj-1))}, v{vAL+1}, {srd(sWS)}, s{sU+7} offen offset:{(rr*2 + (jj >> 1))*1024} sc1')

    SO = (sOWN, sISS, sTK, sCNT, 12, 13, 14, 15)

    def reduce_prep(self):
        A = self.A
        R = vPUB
        SO = self.SO
        A(f's_lshr_b32 s{sU+1}, s2, 5')
        A(f's_lshl_b32 s{sGB}, s{sU+1}, 7')
        A(f's_lshl_b32 s{SO[0]}, s{sU+1}, 17')
        A(f's_and_b32 s{sU+1}, s2, 31')
        A(f's_lshl_b32 s{sU+6}, s{sU+1}, 7')
        A(f's_add_u32 s{SO[0]}, s{SO[0]}, s{sU+6}')
        A(f's_add_u32 s{SO[0]}, s{SO[0]}, {WS_Y}')
        for n in range(1, 8):
            A(f's_add_u32 s{SO[n]}, s{SO[0]}, {n*16384}')
        A(f'v_lshlrev_b32 v{R}, 12, v{vG_}')
        A(f'v_lshl_add_u32 v{R}, v{vC}, 3, v{R}')
        for bit, mul in ((4, 896), (3, 4), (2, 2*896), (1, 4*896), (0, 64)):
            A(f's_bitcmp1_b32 s{sU+1}, {bit}')
            A(f's_cselect_b32 s{sU+6}, {mul}, 0')
            A(f's_add_u32 s{sGB}, s{sGB}, s{sU+6}')
        A(f'v_lshrrev_b32 v{R+1}, 1, v{vC}')
        A(f'v_lshlrev_b32 v{R+1}, 3, v{R+1}')
        A(f'v_and_b32 v{R+2}, 1, v{vC}')
        A(f'v_lshl_add_u32 v{R+1}, v{R+2}, 1, v{R+1}')
        A(f's_load_dword s{sG}, s[18:19], {WS_G}')
        A('s_waitcnt lgkmcnt(0)')

    def reduce(self):
        A = self.A
        R = vPUB
        E = vV[0]
        ns = self.nset

        if self.r2:
            sDn, sC = sKO, 4
            A(f's_not_b32 s{sU+1}, s{sTAG}')
            for n in range(8):
                A(f'v_mov_b32 v{E + 2*n + 1}, s{sU+1}')
            A(f's_mov_b32 s{sDn}, 0')
            self.L('M_p2')
            for n in range(8):
                so = self.SO[n]
                A(f's_bitcmp0_b32 s{sDn}, {n}')
                A('s_cselect_b64 exec, -1, 0')
                A(f'buffer_load_dwordx2 {vr(E + 2*n, 2)}, v{R}, {srd(sWS)}, s{so} offen sc1')
            A('s_mov_b64 exec, -1')
            A(f's_sub_u32 s{sTO}, s{sTO}, 1')
            A(f's_cmp_eq_u32 s{sTO}, 0')
            A('s_cbranch_scc1 M_end')
            A('s_waitcnt vmcnt(0)')
            for q in range(8):
                A(f'v_xor_b32 v{vB + q}, s{sTAG}, v{E + 2*q + 1}')
            A(f'v_or3_b32 v{vT+2}, v{vB}, v{vB+1}, v{vB+2}')
            A(f'v_or3_b32 v{vT+3}, v{vB+3}, v{vB+4}, v{vB+5}')
            A(f'v_or3_b32 v{vT+2}, v{vT+2}, v{vB+6}, v{vB+7}')
            A(f'v_or_b32 v{vT+2}, v{vT+2}, v{vT+3}')
            A(f'v_cmp_ne_u32 vcc, 0, v{vT+2}')
            A(f'v_add_f32 v{vS}, v{E}, v{E+2}')
            A(f'v_add_f32 v{vS+1}, v{E+4}, v{E+6}')
            A(f'v_add_f32 v{vS+2}, v{E+8}, v{E+10}')
            A(f'v_add_f32 v{vS+3}, v{E+12}, v{E+14}')
            A(f'v_add_f32 v{vS}, v{vS}, v{vS+1}')
            A(f'v_add_f32 v{vS+2}, v{vS+2}, v{vS+3}')
            A(f'v_add_f32 v{vT+4}, v{vS}, v{vS+2}')
            A('s_cbranch_vccz M_p2ok')
            for h in range(2):
                for q in range(4):
                    A(f'v_cmp_ne_u32 s[{sC+2*q}:{sC+2*q+1}], 0, v{vB + 4*h + q}')
                A('s_nop 0')
                for q in range(4):
                    A(f's_cmp_eq_u64 s[{sC+2*q}:{sC+2*q+1}], 0')
                    A(f's_cselect_b32 s{sU+1}, {1 << (4*h + q)}, 0')
                    A(f's_or_b32 s{sDn}, s{sDn}, s{sU+1}')
            A('s_branch M_p2')
        else:
            def issue(i):
                for n in range(8):
                    so = self.SO[n]
                    A(f'buffer_load_dwordx2 {vr(E + 16*i + 2*n, 2)}, v{R}, {srd(sWS)}, s{so} offen sc1')
            for i in range(ns):
                issue(i)
                if i < ns - 1:
                    A(f's_sleep {self.stag}')
            self.L('M_p2')
            for i in range(ns):
                e = E + 16*i
                A(f's_waitcnt vmcnt({8*(ns-1)})')
                for q in range(8):
                    A(f'v_xor_b32 v{e + 2*q + 1}, s{sTAG}, v{e + 2*q + 1}')
                A(f'v_or3_b32 v{vT+2}, v{e+1}, v{e+3}, v{e+5}')
                A(f'v_or3_b32 v{vT+3}, v{e+7}, v{e+9}, v{e+11}')
                A(f'v_or3_b32 v{vT+2}, v{vT+2}, v{e+13}, v{e+15}')
                A(f'v_or_b32 v{vT+2}, v{vT+2}, v{vT+3}')
                A(f'v_cmp_ne_u32 vcc, 0, v{vT+2}')
                for st in (1, 2, 4):
                    for q in range(0, 8, 2*st):
                        dst = vT + 4 if st == 4 else e + 2*q
                        A(f'v_add_f32 v{dst}, v{e + 2*q}, v{e + 2*(q+st)}')
                A('s_cbranch_vccz M_p2ok')
                issue(i)
            A(f's_sub_u32 s{sTO}, s{sTO}, 1')
            A(f's_cmp_lg_u32 s{sTO}, 0')
            A('s_cbranch_scc1 M_p2')
            A('s_branch M_end')
        self.L('M_p2ok')
        self.xlane(vT + 4, vT + 5, 'v_add_f32')
        A(f'v_cvt_pk_bf16_f32 v{vT+2}, v{vT+4}, v{vT+4}')
        A('s_mov_b64 exec, 0xffff')
        A(f'buffer_store_short v{vT+2}, v{R+1}, {srd(sOUT)}, s{sGB} offen')
        A('s_mov_b64 exec, 1')
        A('s_cmp_lg_u32 s2, 0')
        A('s_cbranch_scc1 M_nogen')
        A(f'v_mov_b32 v{vT+7}, 0')
        A(f's_add_u32 s{sG}, s{sG}, 1')
        A(f'v_mov_b32 v{vT+8}, s{sG}')
        A(f'buffer_store_dword v{vT+8}, v{vT+7}, {srd(sWS)}, 0 offen offset:{WS_G} sc1')
        self.L('M_nogen')
        A('s_mov_b64 exec, -1')

    def main(self):
        A = self.A
        self.o += ['.globl ' + NAME, '.p2align 8', f'.type {NAME},@function', NAME + ':']
        self.stamp(0)
        if self.ts:
            A('s_memtime s[92:93]')
            for i in range(1, 6):
                A(f's_mov_b64 s[{sTS+2*i}:{sTS+2*i+1}], 0')
        self.prologue()
        A('s_cmp_eq_u32 s3, 2')
        A('s_cbranch_scc1 M_w2')
        if self.bar0 == 2:
            A('s_cmp_eq_u32 s3, 0')
            A('s_cbranch_scc1 M_w0')
        A('s_barrier')
        A('s_cmp_eq_u32 s3, 1')
        A('s_cbranch_scc1 M_w1')
        A('s_cmp_eq_u32 s3, 3')
        A('s_cbranch_scc1 M_w3')

        self.L('M_w0')
        self.startup_loads(16384 * 3, self.bar0 == 2)
        self.stream_init()
        A(f's_waitcnt vmcnt({max(self.sd - 16, 0)})')
        self.set_flag(2)
        self.stamp(3)
        if not self.noq:
            self.wait_flag(0, True)
        self.stamp(1)
        self.q_frags()
        S = self.S
        P = (64 - S) * 4
        PUB = vPUB
        for q in range(10):
            A(f'v_mov_b32 v{PUB + 2*q + 1}, s{sTAG}')
        A(f'v_lshlrev_b32 v{vT+8}, 4, v{vLANE}')
        A(f's_mov_b32 s{sOWN}, s{sKO}')
        A(f's_mov_b32 s{sISS}, 4')
        A(f's_lshr_b32 s{sU}, s2, 2')
        A(f's_lshl_b32 s{sGB}, s{sU}, 22')
        A(f's_add_u32 s{sGB}, s{sGB}, {S * 16384}')
        A(f's_lshl_b32 s{sU}, s{sU}, 8')
        A(f's_add_u32 s{sU}, s{sU}, {WS_C}')
        A(f's_add_u32 s{sCB}, s18, s{sU}')
        A(f's_addc_u32 s{sCB+1}, s19, 0')
        A(f's_mov_b32 s{sTK}, {P}')

        def ticket():
            if P:
                A(f's_mov_b32 s{sTK}, 1')
                A(f's_atomic_add s{sTK}, s[{sCB}:{sCB+1}], 0 glc')

        def next_tile(buf):
            st, jn = self.lab('NS'), self.lab('NJ')
            A(f's_cmp_lt_u32 s{sISS}, {S}')
            A(f's_cbranch_scc1 {st}')
            A('s_waitcnt lgkmcnt(0)')
            A(f's_cmp_ge_u32 s{sTK}, {P}')
            A(f's_cbranch_scc1 M_drain{buf}')
            A(f's_and_b32 s{sU}, s{sTK}, 3')
            A(f's_lshl_b32 s{sU}, s{sU}, 20')
            A(f's_lshr_b32 s{sU+1}, s{sTK}, 2')
            A(f's_lshl_b32 s{sU+1}, s{sU+1}, 14')
            A(f's_add_u32 s{sKO}, s{sGB}, s{sU}')
            A(f's_add_u32 s{sKO}, s{sKO}, s{sU+1}')
            ticket()
            A(f's_branch {jn}')
            self.L(st)
            A(f's_mov_b32 s{sKO}, s{sOWN}')
            A(f's_add_u32 s{sOWN}, s{sOWN}, 16384')
            A(f's_add_u32 s{sISS}, s{sISS}, 1')
            if buf == 0:
                A(f's_cmp_eq_u32 s{sISS}, 41')
                A('s_cbranch_scc1 M_merge')
                self.L('M_merged')
            A(f's_cmp_lg_u32 s{sISS}, {S}')
            A(f's_cbranch_scc1 {jn}')
            ticket()
            self.L(jn)
            A(f's_mov_b32 s{sVO}, s{sKO}')

        self.L('M_loop')
        next_tile(0)
        self.tile(0, True, 48, 48)
        next_tile(1)
        self.tile(1, True, 48, 48)
        A('s_branch M_loop')

        self.L('M_merge')
        self.wait_flag(7)
        A(f's_mov_b32 s{sSAME}, s{sU+9}')
        self.wait_flag(3)
        A(f'v_lshlrev_b32 v{vT+4}, 4, v{vLANE}')
        A(f'ds_read_b128 {vr(vB)}, v{vT+4} offset:{L_H + 8*1024}')
        A('s_waitcnt lgkmcnt(0)')
        A(f'v_max_f32 v{vT}, v{vM}, v{vB}')
        A(f'v_sub_f32 v{vT+1}, v{vM}, v{vT}')
        A(f'v_sub_f32 v{vT+2}, v{vB}, v{vT}')
        A(f'v_exp_f32 v{vT+1}, v{vT+1}')
        A(f'v_exp_f32 v{vT+2}, v{vT+2}')
        A(f'v_mov_b32 v{vM}, v{vT}')
        A('s_nop 0')
        A(f'v_mul_f32 v{vL}, v{vL}, v{vT+1}')
        A(f'v_fmac_f32 v{vL}, v{vB+1}, v{vT+2}')
        A(f'v_mov_b32_dpp v{vAL}, v{vT+1} quad_perm:[0,0,2,2] row_mask:0xf bank_mask:0xf')
        A(f'v_mov_b32_dpp v{vAL+1}, v{vT+1} quad_perm:[1,1,3,3] row_mask:0xf bank_mask:0xf')
        A(f'v_mov_b32_dpp v{vT+5}, v{vT+2} quad_perm:[0,0,2,2] row_mask:0xf bank_mask:0xf')
        A(f'v_mov_b32_dpp v{vT+6}, v{vT+2} quad_perm:[1,1,3,3] row_mask:0xf bank_mask:0xf')
        for half in range(2):
            for j in range(4):
                A(f'ds_read_b128 {vr(vS + 4*j)}, v{vT+4} offset:{L_H + (half*4 + j)*1024}')
            for j in range(8):
                A(f'v_pk_mul_f32 {vr(vO + half*16 + 2*j, 2)}, {vr(vO + half*16 + 2*j, 2)}, {vr(vAL, 2)}')
            A('s_waitcnt lgkmcnt(0)')
            for j in range(8):
                A(f'v_pk_fma_f32 {vr(vO + half*16 + 2*j, 2)}, {vr(vS + 2*j, 2)}, {vr(vT+5, 2)}, {vr(vO + half*16 + 2*j, 2)}')
        A('s_branch M_merged')

        for first in (1, 0):
            self.L(f'M_drain{first}')
            if not self.notail:
                A('s_barrier')
            A(f's_lshl_b32 s{sU}, s2, 12')
            A(f's_add_u32 s{sU}, s{sU}, {WS_P}')
            A(f's_lshl_b32 s{sU+2}, s2, 7')
            A(f's_add_u32 s{sU+2}, s{sU+2}, {WS_ML}')
            self.tile(first, False, 48, 32)
            self.tile(1 - first, False, 16, 0)
            if first == 1:
                A('s_branch M_pub')
        self.L('M_pub')
        self.stamp(2)
        if self.notail:
            A('s_branch M_fin')
        self.xlane(vL, vT, 'v_add_f32')
        A(f'v_mov_b32 v{PUB+16}, v{vM}')
        A(f'v_mov_b32 v{PUB+18}, v{vL}')
        A(f's_cmp_eq_u32 s{sSAME}, 2')
        A('s_cbranch_scc0 M_pubx')
        for pol in ('', ' sc1'):
            if pol:
                self.L('M_pubx')
            for j in range(8):
                A(f'v_cndmask_b32 v{vT+1}, v{vO+4*j}, v{vO+4*j+1}, s[{sMG1}:{sMG1+1}]')
                A(f'v_cndmask_b32 v{vT+2}, v{vO+4*j+2}, v{vO+4*j+3}, s[{sMG1}:{sMG1+1}]')
                A(f'v_cndmask_b32 v{PUB+2*j}, v{vT+1}, v{vT+2}, s[{sMG2}:{sMG2+1}]')
                if j & 1:
                    A(f'buffer_store_dwordx4 {vr(PUB + 2*(j-1))}, v{vT+8}, {srd(sWS)}, s{sU} offen offset:{1024*(j >> 1)}{pol}')
            A('s_mov_b64 exec, 3')
            A(f'buffer_store_dwordx4 {vr(PUB+16)}, v{vT+8}, {srd(sWS)}, s{sU+2} offen{pol}')
            A('s_mov_b64 exec, -1')
            if not pol:
                A('s_branch M_pubd')
        self.L('M_pubd')
        self.set_flag(4)
        self.stamp(3)
        A('s_branch M_fin')

        self.L('M_w1')
        self.stream_init()
        self.wait_flag(2)
        self.startup_loads(16384)
        if not self.noq:
            self.wait_flag(0, True)
        self.stamp(1)
        self.q_frags()
        self.tile(0, False, 48, 32)
        self.tile(1, False, 16, 0)
        A(f'v_lshlrev_b32 v{vT+4}, 4, v{vLANE}')
        A(f'v_mov_b32 v{vB}, v{vM}')
        A(f'v_mov_b32 v{vB+1}, v{vL}')
        A('s_nop 5')
        for j in range(8):
            A(f'ds_write_b128 v{vT+4}, {vr(vO + 4*j)} offset:{L_H + j*1024}')
        A(f'ds_write_b128 v{vT+4}, {vr(vB)} offset:{L_H + 8*1024}')
        self.set_flag(3)
        self.stamp(2)
        if self.notail:
            A('s_branch M_fin')
        if self.noq:
            self.wait_flag(0, True)
        A('s_cmp_ge_u32 s2, 224')
        A('s_cbranch_scc1 M_fin')
        A('s_barrier')
        if self.nogather:
            A('s_branch M_fin')
        self.gather(0, 4 if self.g44 else 3)
        self.set_flag(5)
        A('s_branch M_fin')

        self.L('M_w3')
        if self.notail:
            A('s_branch M_fin')
        A('s_cmp_ge_u32 s2, 224')
        A('s_cbranch_scc1 M_fin')
        if not self.wolate and not self.womid:
            self.wo_frags()
        self.wait_flag(0, True)
        if not self.wolate and self.womid:
            self.wait_flag(3)
            self.wo_frags()
        if not self.wolate:
            self.gemv_prep()
            self.reduce_prep()
        A('s_barrier')
        if self.wolate and not self.nowo:
            self.wo_frags()
        if self.nogather:
            A('s_branch M_fin')
        if self.wolate:
            self.gemv_prep()
            self.reduce_prep()
        self.stamp(3)
        if not self.g44:
            self.gather(6, 2)
        self.wait_flag(5, word2=6)
        self.stamp(4)
        self.gemv()
        self.stamp(2)
        self.reduce()
        A('s_branch M_fin')

        self.L('M_w2')
        if self.noprod:
            A('s_barrier')
            A('s_branch M_fin')
        A('s_setprio 3')
        A(f's_load_dword s{sG}, s[18:19], {WS_G}')
        if self.bar0 != 1:
            A('s_barrier')
        A(f's_and_b32 s{sU}, s2, 3')
        A(f's_cmp_lg_u32 s{sU}, 0')
        A('s_cbranch_scc1 M_noprod1')
        self.q_issue()
        self.L('M_noprod1')
        if self.bar0 == 1:
            A('s_barrier')
        self.q_tag()
        A(f's_getreg_b32 s{sSAME}, hwreg(HW_REG_XCC_ID, 0, 4)')
        A(f's_bfe_u32 s{sU+7}, s2, {(3 << 16) | 2}')
        A(f's_lshl_b32 s{sU+7}, s{sU+7}, 8')
        A(f's_add_u32 s{sU+7}, s{sU+7}, {WS_X}')
        A(f's_lshr_b32 s{sU+1}, s2, 5')
        A(f's_lshl_b32 s{sU+1}, s{sU+1}, 5')
        A(f's_and_b32 s{sU+2}, s2, 3')
        A(f's_lshl_b32 s{sU+2}, s{sU+2}, 3')
        A(f's_add_u32 s{sU+1}, s{sU+1}, s{sU+2}')
        A(f'v_mov_b32 v{vT+4}, s{sU+1}')
        A(f'v_mov_b32 v{vT+5}, s{sSAME}')
        A('s_mov_b64 exec, 1')
        A(f'buffer_store_dwordx2 {vr(vT+5, 2)}, v{vT+4}, {srd(sWS)}, s{sU+7} offen sc1')
        A('s_mov_b64 exec, -1')
        A(f's_and_b32 s{sU+1}, s2, 3')
        A(f's_cmp_lg_u32 s{sU+1}, 0')
        A('s_cbranch_scc1 M_noprod2')
        self.q_compute()
        self.L('M_noprod2')
        self.stamp(2)
        if self.nopoll:
            A('s_branch M_fin')
        self.q_gather()
        self.stamp(1)
        A('s_setprio 0')
        self.wait_flag(3)
        A(f'v_and_b32 v{vT}, 31, v{vLANE}')
        A(f'v_lshlrev_b32 v{vT}, 3, v{vT}')
        self.L('M_xpoll')
        A(f'buffer_load_dwordx2 {vr(vS, 2)}, v{vT}, {srd(sWS)}, s{sU+7} offen sc1')
        A('s_waitcnt vmcnt(0)')
        A(f'v_cmp_ne_u32 s[{sMG1}:{sMG1+1}], s{sSAME}, v{vS}')
        A(f'v_cmp_ne_u32 vcc, s{sTAG}, v{vS+1}')
        self.poll_tail('M_xpoll')
        A(f's_cmp_eq_u64 s[{sMG1}:{sMG1+1}], 0')
        A(f's_cselect_b32 s{sU+1}, {2 if self.l2 else 1}, 1')
        A(f'v_mov_b32 v{vT+1}, {L_FL + 28}')
        A(f'v_mov_b32 v{vT+2}, s{sU+1}')
        A(f'ds_write_b32 v{vT+1}, v{vT+2}')
        if self.notail:
            A('s_branch M_fin')
        A('s_cmp_ge_u32 s2, 224')
        A('s_cbranch_scc1 M_fin')
        A('s_barrier')
        if self.nogather:
            A('s_branch M_fin')
        self.gather(*((4, 4) if self.g44 else (3, 3)))
        self.set_flag(6)

        self.L('M_fin')
        if self.ts:
            self.stamp(5)
            A('s_memtime s[94:95]')
            A('s_waitcnt lgkmcnt(0)')
            A(f's_lshl_b32 s{sU}, s2, 3')
            A(f's_add_u32 s{sU}, s{sU}, s3')
            A(f's_lshl_b32 s{sU}, s{sU}, 6')
            A(f's_add_u32 s{sU}, s{sU}, {WS_T}')
            A(f'v_mov_b32 v{vT}, 0')
            A('s_mov_b64 exec, 1')
            if self.dbgt:
                A('s_mov_b64 s[4:5], s[16:17]')
                A('s_mov_b32 s6, 256')
                A('s_mov_b32 s7, 0x00020000')
                A('s_cmp_lg_u32 s2, 0')
                A('s_cbranch_scc1 M_nd')
                A(f's_sub_u32 s{sU+1}, s{sTS+10}, s{sTS}')
                A(f's_sub_u32 s{sU+2}, s{sTS+4}, s{sTS}')
                A(f's_sub_u32 s{sU+3}, s{sTS+2}, s{sTS}')
                A(f'v_mov_b32 v{vB}, s{sU+1}')
                A(f'v_mov_b32 v{vB+1}, s{sU+2}')
                A(f'v_mov_b32 v{vB+2}, s{sU+3}')
                A(f'v_mov_b32 v{vB+3}, 0')
                A(f's_lshl_b32 s{sU+1}, s3, 4')
                A(f'buffer_store_dwordx4 {vr(vB)}, v{vT}, s[4:7], s{sU+1} offen')
                A('s_nop 1')
                self.L('M_nd')
            for i in range(8):
                A(f'v_mov_b32 v{vB}, s{sTS + 2*i}')
                A(f'v_mov_b32 v{vB+1}, s{sTS + 2*i + 1}')
                A(f'buffer_store_dwordx2 {vr(vB, 2)}, v{vT}, {srd(sWS)}, s{sU} offen offset:{8*i}')
                A('s_nop 1')
        self.L('M_end')
        A('s_endpgm')

    def build(self):
        self.o = [
            '; GQA decode attention block: q-projection + flash-decoding over the K/V cache + out-projection, one launch.',
            '; Generated by bench/gen14.py (hand-written generator).',
            '; kernarg: x@0 k@8 v@16 wq@24 wo@32 out@40 debug@48 ws@56',
            '; One 4-wave workgroup per CU = (batch, kv head, quarter of the keys):',
            ';   wave 0 streams K/V tiles (32 keys) straight into registers (nt loads, 4 buffers), MFMA QK^T / PV, online softmax;',
            ';          the last tiles of the 4 workgroups of a (batch, kv head) are handed out through a shared counter',
            ';   wave 1 takes two early tiles while q is on its way, then helps gathering the split partials',
            ';   wave 2 computes a 64-column slice of q (every 4th workgroup), gathers q, gathers partials',
            ';   wave 3 holds a 128x64 tile of wo, multiplies it with the combined o of all 8 batches, sums the final outputs',
            '; Hand-offs between workgroups are 8-byte {data, tag} granules in d_ws; the tag is derived from a generation',
            '; word in d_ws that workgroup 0 advances at the end of every launch.',
            f'; @launch grid=(256,1,1) block=(256,1,1) lds={LDS_SIZE}',
                  '.amdgcn_target "amdgcn-amd-amdhsa--gfx950"', '.text']
        self.main()
        self.o += ['.section .rodata,"a"', '.p2align 6',
                   f'.amdhsa_kernel {NAME}',
                   f'  .amdhsa_next_free_vgpr {NV + NA}',
                   '  .amdhsa_next_free_sgpr 100',
                   f'  .amdhsa_accum_offset {NV}',
                   '  .amdhsa_group_segment_fixed_size 0',
                   '  .amdhsa_kernarg_size 64',
                   '  .amdhsa_user_sgpr_count 2',
                   '  .amdhsa_user_sgpr_kernarg_segment_ptr 1',
                   '  .amdhsa_system_sgpr_workgroup_id_x 1',
                   '  .amdhsa_float_denorm_mode_32 3',
                   '.end_amdhsa_kernel']
        return '\n'.join(self.o) + '\n'


if __name__ == '__main__':
    kw = {}
    for a in sys.argv[2:]:
        k, v = a.split('=')
        kw[k] = int(v) if v.isdigit() else v.replace('+', ' ')
    open(sys.argv[1], 'w').write(Gen(**kw).build())
```
